```python
import torch

def _softmax(x, axis=-1):
    return torch.softmax(x, dim=axis)
def _gelu(x):
    return torch.nn.functional.gelu(x, approximate="tanh")
def _silu(x):
    return torch.nn.functional.silu(x)
def _sigmoid(x):
    return torch.sigmoid(x)
def _layernorm(x, axis=-1, eps=1e-5):
    m = x.mean(dim=axis, keepdim=True)
    v = x.var(dim=axis, keepdim=True, unbiased=False)
    return (x - m) / torch.sqrt(v + eps)
def _scatter_add(tgt, idx, src, axis=0):
    return tgt.clone().index_add_(axis, idx, src)
def _segment_sum(src, seg, n):
    out = torch.zeros((n,) + src.shape[1:], dtype=src.dtype)
    return out.index_add_(0, seg, src)
def _pad(x, pw):
    flat = tuple(v for pair in reversed(pw) for v in pair)
    return torch.nn.functional.pad(x, flat)

kernel_name = 'recurrent_scan__sliding_block_cached__geglu_ffn__decode'

def setup_inputs():

    _w = (lambda a: (lambda t: t.to(torch.bfloat16) if t.is_floating_point() else t)(torch.as_tensor(a)))
    def _A_setup():
        B, Sq, D = 2, 1, 640
        Hq, Hkv, Sk, Dh = 32, 32, 8192, 128
        assert Hq % Hkv == 0, (Hq, Hkv)
        return {
            "x": _w((lambda *s: torch.randn(*s, dtype=torch.bfloat16) * 0.05)(B, Sq, D)),
            "k_cache": _w((lambda *s: torch.randn(*s, dtype=torch.bfloat16) * 0.8)(B, Hkv, Sk, Dh)),
            "v_cache": _w((lambda *s: torch.randn(*s, dtype=torch.bfloat16) * 0.2)(B, Hkv, Sk, Dh)),
            "wq": _w((lambda *s: torch.randn(*s, dtype=torch.bfloat16) * 0.8)(D, Hq * Dh) * (D ** -0.5)),
            "wo": _w((lambda *s: torch.randn(*s, dtype=torch.bfloat16) * 0.2)(Hq * Dh, D) * ((Hq * Dh) ** -0.5)),
        }
    _A_in = _A_setup()

    def _B_setup():
        B, S, D, F = 2, 1, 640, 1728
        return {
            "x": _w((lambda *s: torch.randn(*s, dtype=torch.bfloat16) * 0.05)(B, S, D)),
            "w_gate": _w((lambda *s: torch.randn(*s, dtype=torch.bfloat16) * 0.1)(D, F)),
            "w_up": _w((lambda *s: torch.randn(*s, dtype=torch.bfloat16) * 0.1)(D, F)),
            "w_down": _w((lambda *s: torch.randn(*s, dtype=torch.bfloat16) * 0.1)(F, D)),
        }
    _B_in = _B_setup()

    return {
        "A_x": _A_in["x"],
        "A_k_cache": _A_in["k_cache"],
        "A_v_cache": _A_in["v_cache"],
        "A_wq": _A_in["wq"],
        "A_wo": _A_in["wo"],
        "B_x": _B_in["x"],
        "B_w_gate": _B_in["w_gate"],
        "B_w_up": _B_in["w_up"],
        "B_w_down": _B_in["w_down"],
    }

def reference(A_x, A_k_cache, A_v_cache, A_wq, A_wo, B_x, B_w_gate, B_w_up, B_w_down):
    def _A_ref(x, k_cache, v_cache, wq, wo):
        B, Sq, D = x.shape
        Hq, Dh = 32, 128
        Hkv, Sk = k_cache.shape[1], k_cache.shape[2]
        W = min(4096, max(256, Sk // 4))
        rep = Hq // Hkv
        q = (lambda x, *d: x.permute(*d))((x @ wq).reshape(B, Sq, Hq, Dh), 0, 2, 1, 3)
        k = (lambda x, n, axis: torch.repeat_interleave(x, n, dim=axis))(k_cache[:, :, Sk - W:, :], rep, axis=1)
        v = (lambda x, n, axis: torch.repeat_interleave(x, n, dim=axis))(v_cache[:, :, Sk - W:, :], rep, axis=1)
        scores = torch.einsum("bhqd,bhkd->bhqk", q, k) * (Dh ** -0.5)
        p = _softmax(scores, axis=-1)
        o = torch.einsum("bhqk,bhkd->bhqd", p, v)
        return (lambda x, *d: x.permute(*d))(o, 0, 2, 1, 3).reshape(B, Sq, Hq * Dh) @ wo

    def _B_ref(x, w_gate, w_up, w_down):
        return (_gelu(x @ w_gate) * (x @ w_up)) @ w_down

    x = A_x
    xn = _layernorm(x, axis=-1)
    s = _A_ref(xn, A_k_cache, A_v_cache, A_wq, A_wo)
    g = _silu(_B_ref(xn, B_w_gate, B_w_up, B_w_down))
    return x + s * g
```

```python
import re

def _regs(tok):
    tok = tok.strip()
    tok = tok.lstrip('-')
    if tok.startswith('abs(') or tok.startswith('|'):
        tok = tok.replace('abs(', '').replace(')', '').replace('|', '')
    m = re.fullmatch(r'([vas])\[(\d+):(\d+)\]', tok)
    if m:
        return {f"{m.group(1)}{i}" for i in range(int(m.group(2)), int(m.group(3)) + 1)}
    m = re.fullmatch(r'([vas])(\d+)', tok)
    if m:
        return {tok}
    if tok in ('vcc', 'vcc_lo', 'vcc_hi'):
        return {'vcc'}
    if tok in ('exec', 'exec_lo', 'exec_hi'):
        return {'exec'}
    if tok == 'm0':
        return {'m0'}
    return set()

TRANS = ('v_exp_f32', 'v_log_f32', 'v_rcp_f32', 'v_rsq_f32', 'v_sqrt_f32', 'v_sin_f32', 'v_cos_f32')

class Ins:
    def __init__(self, text):
        self.text = text
        t = text.split(';')[0].strip()
        self.op = t.split()[0] if t else ''
        rest = t[len(self.op):].strip()
        ops = []
        depth = 0; cur = ''
        for ch in rest:
            if ch in '[(': depth += 1
            if ch in '])': depth -= 1
            if ch == ',' and depth == 0:
                ops.append(cur.strip()); cur = ''
            else:
                cur += ch
        if cur.strip(): ops.append(cur.strip())
        mods = ''
        if ops:
            parts = ops[-1].split()
            if len(parts) > 1:
                ops[-1] = parts[0]; mods = ' '.join(parts[1:])
        self.ops = ops; self.mods = mods
        op = self.op
        self.is_valu = op.startswith('v_') and not op.startswith('v_mfma')
        self.is_mfma = op.startswith('v_mfma')
        self.is_salu = op.startswith('s_') and not op.startswith(('s_load', 's_waitcnt', 's_nop', 's_barrier', 's_cbranch', 's_branch', 's_endpgm', 's_sleep', 's_setprio', 's_memtime', 's_memrealtime'))
        self.is_vmem = op.startswith(('buffer_', 'global_', 'flat_'))
        self.is_ds = op.startswith('ds_')
        self.is_dpp = ('_dpp' in op) or any(k in mods for k in ('row_', 'quad_perm', 'row_newbcast'))
        self.is_trans = any(op.startswith(x) for x in TRANS)
        self.is_perml = op.startswith('v_permlane')
        self.is_readlane = op.startswith(('v_readlane', 'v_readfirstlane'))
        self.dst = set(); self.src = set()
        R = [_regs(o) for o in ops]
        if self.is_mfma:
            self.dst = R[0]; self.srcA = R[1]; self.srcB = R[2]; self.srcC = R[3]
            self.src = R[1] | R[2] | R[3]
        elif self.is_valu:
            if op.startswith('v_cmp'):
                self.dst = R[0]; self.src = set().union(*R[1:])
                if op.startswith('v_cmpx'): self.dst |= {'exec'}
            elif op.startswith(('v_add_co', 'v_sub_co', 'v_addc_co', 'v_subb_co', 'v_subrev_co')):
                self.dst = R[0] | R[1]; self.src = set().union(*R[2:])
            elif self.is_perml and 'swap' in op:
                self.dst = R[0] | R[1]; self.src = R[0] | R[1]
            else:
                self.dst = R[0]; self.src = set().union(*R[1:]) if len(R) > 1 else set()
                if op.startswith(('v_fmac', 'v_dot2c', 'v_mac')) or self.is_dpp:
                    self.src |= R[0]
                if op.startswith('v_cndmask') and len(ops) == 3:
                    self.src |= {'vcc'}
        elif self.is_vmem:
            if 'store' in op or ('atomic' in op and 'sc0' not in mods):
                self.src = set().union(*R)
            else:
                if ' lds' in (' ' + mods):
                    self.src = set().union(*R)
                else:
                    self.dst = R[0]; self.src = set().union(*R[1:])
        elif self.is_ds:
            if op.startswith(('ds_read', 'ds_bpermute', 'ds_permute', 'ds_swizzle')) or 'rtn' in op:
                self.dst = R[0]; self.src = set().union(*R[1:]) if len(R) > 1 else set()
            else:
                self.src = set().union(*R)
        elif self.is_salu:
            if op.startswith('s_cmp'):
                self.src = set().union(*R)
            else:
                self.dst = R[0] if R else set(); self.src = set().union(*R[1:]) if len(R) > 1 else set()
                if 'saveexec' in op: self.dst |= {'exec'}; self.src |= {'exec'}
        self.ws = 1
        if op == 's_nop':
            self.ws = int(ops[0], 0) + 1

def vg(s):
    return {r for r in s if r[0] in 'va' and r != 'vcc'}
def sg(s):
    return {r for r in s if r[0] == 's' or r == 'vcc'}

def need(prev, cur):
    n = 0
    if prev.is_valu:
        pv = vg(prev.dst); ps = sg(prev.dst)
        if cur.is_dpp and cur.is_valu and (pv & vg(cur.src)): n = max(n, 2)
        if cur.is_readlane and (pv & vg(cur.src)): n = max(n, 1)
        if cur.is_perml and (pv & vg(cur.src)): n = max(n, 2)
        if cur.is_mfma and (pv & cur.src): n = max(n, 2)
        if prev.is_trans and cur.is_valu and not cur.is_trans and (pv & vg(cur.src)): n = max(n, 1)
        if prev.is_trans and cur.is_valu and cur.is_trans and (pv & vg(cur.src)): n = max(n, 1)
        if ps:
            if (cur.is_valu or cur.is_mfma) and (ps & sg(cur.src)): n = max(n, 2)
            if cur.is_readlane and (ps & sg(cur.src)): n = max(n, 4)
            if cur.is_vmem and (ps & sg(cur.src)): n = max(n, 5)
            if cur.is_salu and (ps & sg(cur.src)): n = max(n, 1)
        if 'exec' in prev.dst:
            if cur.is_dpp: n = max(n, 5)
            if cur.is_readlane or cur.is_perml or cur.is_mfma: n = max(n, 4)
    if prev.is_valu and prev.op.startswith('v_dot'):
        pv = vg(prev.dst)
        if cur.op == prev.op:
            ab = _regs(cur.ops[1]) | _regs(cur.ops[2])
            if pv & ab: n = max(n, 3)
        elif (cur.is_valu or cur.is_mfma or cur.is_vmem or cur.is_ds) and (pv & (vg(cur.src) | vg(cur.dst))):
            n = max(n, 3)
    if prev.is_mfma:
        passes = 4 if '16x16x32' in prev.op else 8
        rd = {4: 8, 8: 12}[passes]
        if (cur.is_valu or cur.is_vmem or cur.is_ds):
            if prev.dst & (cur.src | cur.dst): n = max(n, rd)
            if cur.is_valu and (prev.srcC & cur.dst): n = max(n, {4: 3, 8: 7}[passes])
        if cur.is_mfma:
            if prev.dst & (cur.srcA | cur.srcB): n = max(n, rd)
            if (prev.dst & cur.srcC) and prev.dst != cur.srcC: n = max(n, {4: 6, 8: 10}[passes])
    if prev.is_vmem and 'store' in prev.op and ('x4' in prev.op or 'x3' in prev.op):
        if cur.is_valu and (vg(prev.src) & vg(cur.dst)): n = max(n, 2)
    if prev.is_salu and 'm0' in prev.dst and (cur.is_vmem and 'lds' in cur.mods): n = max(n, 1)
    if prev.is_salu and 'exec' in prev.dst and cur.is_dpp: n = max(n, 1)
    return n

class Asm:
    def __init__(self):
        self.lines = []
        self.hist = []
        self.nops = 0
    def raw(self, text):
        self.lines.append(text)
    def label(self, name):
        self.lines.append(f"{name}:")
    def comment(self, t):
        self.lines.append(f"    ; {t}")
    def fence(self, n=1):
        self.I(f"s_nop {n-1}") if n > 0 else None
    def I(self, text):
        ins = Ins(text)
        req = 0; dist = 0
        for p in reversed(self.hist):
            r = need(p, ins) - dist
            if r > req: req = r
            dist += p.ws
            if dist > 24: break
        while req > 0:
            k = min(req, 16)
            nop = Ins(f"s_nop {k-1}")
            self.lines.append(f"    s_nop {k-1}")
            self.hist.append(nop); self.nops += 1
            req -= k
        self.lines.append("    " + text)
        self.hist.append(ins)
        if len(self.hist) > 64: self.hist = self.hist[-64:]
        return ins
    def __call__(self, *texts):
        for t in texts:
            for line in t.strip().split('\n'):
                line = line.strip()
                if not line or line.startswith(';'): continue
                if line.endswith(':'):
                    self.label(line[:-1])
                else:
                    self.I(line)
    def text(self):
        return "\n".join(self.lines)
```

```python
import sys, argparse
from asmgen import Asm

NAME = "recurrent_scan__sliding_block_cached__geglu_ffn__decode"

WS_F   = 0x00000
WS_P1Q = 0x10000
WS_P1G = 0x50000
WS_OP  = 0x90000
WS_Y   = 0xC0000
WS_SIZE= 0x100000
WS_TS  = 0x200000
OPSTR  = 640
L_QT   = 0x000
L_QFLAG= 0x100
L_ISS  = 0x104
L_AT   = 0x200
L_ML   = 0x600
L_OW   = 0x800
L_YR   = 0x1800
LDS_SIZE = 0x2800

SENT = 0xFFFFFFFF
HWID = False
C_SCALE = 0.08838834764831845 * 1.4426950408889634
import struct
def f2u(f): return struct.unpack('<I', struct.pack('<f', f))[0]

def gen(opt):
    a = Asm()
    TS = opt.ts
    def stamp(idx):
        if TS:
            a(f"s_memrealtime s[{64+2*idx}:{65+2*idx}]")
    if TS: a("s_memrealtime s[64:65]")
    a("""
    s_load_dwordx16 s[8:23], s[0:1], 0
    s_load_dwordx8 s[24:31], s[0:1], 64
    s_cmp_ge_u32 s2, 256
    s_cbranch_scc1 L_END
    v_lshrrev_b32 v2, 6, v0
    v_and_b32 v0, 63, v0
    v_readfirstlane_b32 s3, v2
    s_lshr_b32 s4, s2, 3
    s_and_b32 s5, s2, 7
    v_and_b32 v1, 15, v0
    v_lshrrev_b32 v2, 4, v0
    v_and_b32 v3, 7, v0
    v_and_b32 v4, 1, v0
    v_mov_b32 v5, 0xffff
    v_lshlrev_b32 v4, 4, v4
    v_lshlrev_b32 v5, v4, v5
    v_lshrrev_b32 v3, 1, v3
    """)
    for r in range(4):
        a(f"v_cmp_eq_u32 vcc, {r}, v3")
        a(f"v_cndmask_b32 v{8+r}, 0, v5, vcc")
    if not opt.nopf:
        a("""
        s_cmp_eq_u32 s3, 3
        s_cbranch_scc0 L_NOPF
        s_getpc_b64 s[50:51]
        L_PCREF:
        s_sub_u32 s50, s50, L_PCREF-%s_kernel
        s_subb_u32 s51, s51, 0
        v_lshlrev_b32 v6, 4, v0
        """ % NAME)
        for i in range(opt.pfn):
            if i % 4 == 0 and i > 0:
                a("s_add_u32 s50, s50, 4096")
                a("s_addc_u32 s51, s51, 0")
            a(f"global_load_dwordx4 v[92:95], v6, s[50:51] offset:{(i%4)*1024}")
        a.label("L_NOPF")
    a("""
    v_mov_b32 v6, 0
    v_mov_b32 v7, 0
    v_mov_b32 v12, %d
    ds_write_b64 v12, v[6:7]
    s_waitcnt lgkmcnt(0)
    s_mov_b32 s32, s30
    s_and_b32 s33, s31, 0xffff
    s_mov_b32 s34, %d
    s_mov_b32 s35, 0x20000
    s_cmp_eq_u32 s3, 0
    s_cbranch_scc1 L_SERVICE
    s_barrier
    s_cmp_lt_u32 s3, 4
    s_cbranch_scc1 L_SERVICE
    """ % (L_QFLAG, WS_SIZE))
    a("""
    s_sub_u32 s6, s3, 4
    s_mov_b32 s36, s10
    s_and_b32 s37, s11, 0xffff
    s_mov_b32 s38, 0x8000000
    s_mov_b32 s39, 0x20000
    s_mov_b32 s40, s12
    s_and_b32 s41, s13, 0xffff
    s_mov_b32 s42, 0x8000000
    s_mov_b32 s43, 0x20000
    s_lshr_b32 s44, s5, 2
    s_lshl_b32 s44, s44, 5
    s_add_u32 s44, s44, s4
    s_lshl_b32 s44, s44, 21
    s_and_b32 s45, s5, 3
    s_lshl_b32 s45, s45, 17
    s_add_u32 s44, s44, s45
    s_lshl_b32 s45, s6, 12
    s_add_u32 s44, s44, s45
    s_add_u32 s44, s44, 0x180000
    s_add_u32 s45, s44, 0x8000
    s_add_u32 s46, s44, 0x10000
    s_add_u32 s47, s44, 0x18000
    v_lshlrev_b32 v3, 4, v0
    v_lshlrev_b32 v12, 4, v1
    v_mov_b32 v13, %d
    v_mov_b32 v14, 1
    """ % L_QFLAG)
    KB = 36
    D = opt.depth; X = opt.xv
    def kload(jj): a(f"buffer_load_dwordx4 v[{KB+4*jj}:{KB+4*jj+3}], v3, s[36:39], s{44+jj//4} offen offset:{(jj%4)*1024} nt")
    def vload(jj): a(f"buffer_load_dwordx4 a[{4*jj}:{4*jj+3}], v3, s[40:43], s{44+jj//4} offen offset:{(jj%4)*1024} nt")
    n = 0
    for jj in range(16):
        if n >= D: a(f"s_waitcnt vmcnt({D-1})")
        kload(jj); n += 1
    for jj in range(X):
        if n >= D: a(f"s_waitcnt vmcnt({D-1})")
        vload(jj); n += 1
    def issued_signal():
        stamp(1)
        a("""
        s_mov_b64 exec, 1
        ds_add_u32 v13, v14 offset:4
        s_mov_b64 exec, -1
        """)
    if X == 16: issued_signal()
    a(f"""
    L_ST_QW:
    ds_read_b32 v15, v13
    s_waitcnt lgkmcnt(0)
    v_readfirstlane_b32 s48, v15
    s_cmp_lg_u32 s48, {0 if opt.exp not in (1,2,3,6,7,8,9,13,14) else 12345}
    s_cbranch_scc1 L_ST_QGO
    s_sleep {opt.sleep}
    s_branch L_ST_QW
    L_ST_QGO:
    ds_read_b128 v[4:7], v12
    s_waitcnt lgkmcnt(0)
    """)
    stamp(2)
    nv = X
    rem = 16 - X
    for jj in range(16):
        k = KB + 4*jj
        need = (15 - jj) + nv
        if need < D: a(f"s_waitcnt vmcnt({need})")
        a(f"v_dot2_f32_bf16 v{k}, v{k}, v4, 0")
        a(f"v_dot2_f32_bf16 v{k}, v{k+1}, v5, v{k}")
        a(f"v_dot2_f32_bf16 v{k}, v{k+2}, v6, v{k}")
        a(f"v_dot2_f32_bf16 v{k}, v{k+3}, v7, v{k}")
        if rem and nv < 16 and ((jj + 1) * rem) // 16 > (nv - X):
            a(f"s_waitcnt vmcnt({D-1})")
            vload(nv); nv += 1
            if nv == 16: issued_signal()
    assert nv == 16
    P = lambda j: f"v{KB+4*j}"
    for j in range(8):
        a(f"v_add_f32_dpp {P(j)}, {P(j)}, {P(j)} row_ror:8 row_mask:0xf bank_mask:0x3")
    for j in range(8):
        a(f"v_add_f32_dpp {P(j)}, {P(j+8)}, {P(j+8)} row_ror:8 row_mask:0xf bank_mask:0xc")
    for j in range(4):
        a(f"v_add_f32_dpp {P(j)}, {P(j)}, {P(j)} row_shl:4 row_mask:0xf bank_mask:0x5")
    for j in range(4):
        a(f"v_add_f32_dpp {P(j)}, {P(j+4)}, {P(j+4)} row_shr:4 row_mask:0xf bank_mask:0xa")
    for j in range(4):
        a(f"v_add_f32_dpp {P(j)}, {P(j)}, {P(j)} quad_perm:[1,0,3,2] row_mask:0xf bank_mask:0xf")
    for j in range(4):
        a(f"v_add_f32_dpp {P(j)}, {P(j)}, {P(j)} quad_perm:[2,3,0,1] row_mask:0xf bank_mask:0xf")
    if opt.dump_scores:
        a(f"""
        s_mov_b32 s52, s30
        s_and_b32 s53, s31, 0xffff
        s_mov_b32 s54, 0x1000000
        s_mov_b32 s55, 0x20000
        s_lshl_b32 s56, s2, 3
        s_add_u32 s56, s56, s6
        s_lshl_b32 s56, s56, 10
        s_add_u32 s56, s56, 0x300000
        v_lshlrev_b32 v15, 2, v0
        """)
        for q in range(4):
            a(f"buffer_store_dword {P(q)}, v15, s[52:55], s56 offen offset:{q*256}")
    a(f"""
    v_max_f32 v16, {P(0)}, {P(1)}
    v_max3_f32 v16, {P(2)}, {P(3)}, v16
    v_max_f32_dpp v16, v16, v16 row_ror:4 row_mask:0xf bank_mask:0xf
    v_max_f32_dpp v16, v16, v16 row_ror:8 row_mask:0xf bank_mask:0xf
    v_mov_b32 v17, v16
    v_permlane16_swap_b32 v17, v16
    v_max_f32 v16, v16, v17
    v_mov_b32 v17, v16
    v_permlane32_swap_b32 v17, v16
    v_max_f32 v16, v16, v17
    s_mov_b32 s48, 0x{f2u(C_SCALE):08x}
    v_mul_f32 v16, s48, v16
    """)
    for q in range(4):
        a(f"v_fma_f32 {P(q)}, {P(q)}, s48, -v16")
    for q in range(4):
        a(f"v_exp_f32 {P(q)}, {P(q)}")
    a(f"""
    v_add_f32 v17, {P(0)}, {P(1)}
    v_add_f32 v18, {P(2)}, {P(3)}
    """)
    for q in range(4):
        a(f"v_cvt_pk_bf16_f32 v{24+q}, {P(q)}, {P(q)}")
    a(f"""
    v_add_f32 v17, v17, v18
    v_add_f32_dpp v17, v17, v17 row_ror:4 row_mask:0xf bank_mask:0xf
    v_add_f32_dpp v17, v17, v17 row_ror:8 row_mask:0xf bank_mask:0xf
    v_mov_b32 v18, v17
    v_permlane16_swap_b32 v18, v17
    v_add_f32 v17, v17, v18
    v_mov_b32 v18, v17
    v_permlane32_swap_b32 v18, v17
    v_add_f32 v17, v17, v18
    """)
    a(f"""
    s_lshl_b32 s49, s6, 3
    s_add_u32 s49, s49, {L_ML}
    v_mov_b32 v18, s49
    s_mov_b64 exec, 1
    ds_write_b64 v18, v[16:17]
    s_mov_b64 exec, -1
    """)
    stamp(3)
    for jj in range(16):
        q = jj % 4; bank = jj // 4
        ar = 28 + 4*(jj % 2)
        for r in range(4):
            a(f"v_and_b32_dpp v{ar+r}, v{24+q}, v{8+r} row_newbcast:{4*bank} row_mask:0xf bank_mask:0xf")
        a(f"s_waitcnt vmcnt({15-jj})")
        c = "0" if jj == 0 else "v[20:23]"
        a(f"v_mfma_f32_16x16x32_bf16 v[20:23], v[{ar}:{ar+3}], a[{4*jj}:{4*jj+3}], {c}")
    stamp(4)
    a(f"""
    v_lshlrev_b32 v12, 5, v1
    v_lshl_add_u32 v12, v2, 4, v12
    s_lshl_b32 s49, s6, 9
    s_add_u32 s49, s49, {L_OW}
    v_add_u32 v12, s49, v12
    s_mov_b32 exec_hi, 0
    ds_write_b128 v12, v[20:23]
    s_mov_b32 exec_hi, -1
    s_waitcnt lgkmcnt(0)
    s_barrier
    """)
    if TS:
        emit_ts_store(a, 5)
    a("s_endpgm")

    a.label("L_SERVICE")
    if opt.exp == 1:
        if TS: emit_ts_store(a, 13)
        a("s_endpgm")
    a("s_setprio 3")
    a("""
    s_mul_i32 s6, s4, 3
    s_add_u32 s6, s6, s5
    s_sub_u32 s6, s6, 5
    s_mov_b32 s7, 0
    s_cmp_lt_u32 s5, 5
    s_cbranch_scc1 L_SV_TYPED
    s_mov_b32 s7, 1
    s_cmp_lt_u32 s6, 70
    s_cbranch_scc1 L_SV_TYPED
    s_mov_b32 s7, 2
    s_cmp_lt_u32 s6, 90
    s_cbranch_scc1 L_SV_TYPED
    s_mov_b32 s7, 3
    L_SV_TYPED:
    s_cmp_ge_u32 s3, 2
    s_cbranch_scc1 L_SV23_EARLY
    """)
    a(f"""
    s_mov_b32 s36, s8
    s_and_b32 s37, s9, 0xffff
    s_mov_b32 s38, 2560
    s_mov_b32 s39, 0x20000
    v_lshrrev_b32 v3, 5, v0
    v_mul_u32_u24 v3, 1280, v3
    v_and_b32 v4, 31, v0
    v_mul_u32_u24 v4, 40, v4
    v_add_u32 v3, v3, v4
    v_bfe_u32 v4, v0, 3, 1
    v_mul_u32_u24 v5, 1280, v4
    v_mul_u32_u24 v6, 40, v2
    v_add_u32 v5, v5, v6
    s_mul_i32 s44, s5, 160
    """)
    for i in range(5):
        a(f"buffer_load_dwordx2 v[{20+2*i}:{21+2*i}], v3, s[36:39], 0 offen offset:{8*i}")
    for i in range(5):
        a(f"buffer_load_dwordx2 v[{30+2*i}:{31+2*i}], v5, s[36:39], s44 offen offset:{8*i}")
    a(f"""
    s_cmp_eq_u32 s3, 0
    s_cbranch_scc0 L_SV1_PAR
    s_mov_b32 s40, s14
    s_and_b32 s41, s15, 0xffff
    s_mov_b32 s42, {640*8192}
    s_mov_b32 s45, 8192
    s_lshl_b32 s46, s4, 8
    s_lshl_b32 s47, s2, 10
    s_add_u32 s47, s47, {WS_P1Q}
    s_mul_i32 s48, s2, {OPSTR}
    s_add_u32 s48, s48, {WS_OP}
    s_mov_b32 s49, 40
    s_mov_b32 s50, 0
    s_mov_b32 s51, 16
    s_branch L_SV01_GO
    L_SV1_PAR:
    s_cmp_lt_u32 s4, 14
    s_cselect_b32 s40, s20, s22
    s_cselect_b32 s41, s21, s23
    s_cselect_b32 s46, s4, 0
    s_cbranch_scc1 L_SV1_P2
    s_sub_u32 s46, s4, 14
    L_SV1_P2:
    s_and_b32 s41, s41, 0xffff
    s_mov_b32 s42, {640*3456}
    s_cmp_lt_u32 s4, 28
    s_cselect_b32 s42, s42, 0
    s_cselect_b32 s46, s46, 0
    s_mov_b32 s51, 16
    s_cmp_eq_u32 s46, 13
    s_cselect_b32 s51, 8, s51
    s_lshl_b32 s46, s46, 8
    s_mov_b32 s45, 3456
    s_lshl_b32 s47, s2, 10
    s_add_u32 s47, s47, {WS_P1G}
    s_mul_i32 s48, s4, 5
    s_add_u32 s48, s48, s5
    s_add_u32 s49, s6, 160
    s_cmp_eq_u32 s7, 0
    s_cselect_b32 s48, s48, s49
    s_cmp_lt_u32 s7, 2
    s_cselect_b32 s48, s48, 250
    s_lshl_b32 s48, s48, 10
    s_add_u32 s48, s48, {WS_Y}
    s_mov_b32 s49, 64
    s_mov_b32 s50, 32
    L_SV01_GO:
    s_mov_b32 s43, 0x20000
    """)
    if opt.exp in (20, 22): a("s_mov_b32 s42, 0")
    a(f"""
    s_mul_i32 s52, s45, 20
    v_mul_lo_u32 v6, v2, s52
    v_lshl_add_u32 v6, v1, 4, v6
    v_mov_b32 v7, 0x7ffffff0
    v_cmp_gt_u32 vcc, s51, v1
    v_cndmask_b32 v6, v7, v6, vcc
    s_mul_i32 s52, s5, 80
    s_mul_i32 s52, s52, s45
    s_add_u32 s52, s52, s46
    """)
    def breg(t):
        if t < 17: return f"a[{4*t}:{4*t+3}]"
        return f"v[{88+4*(t-17)}:{88+4*(t-17)+3}]"
    for t in range(20):
        a(f"buffer_load_dwordx4 {breg(t)}, v6, s[40:43], s52 offen nt")
        if t < 19: a("s_add_u32 s52, s52, s45")
    a(f"""
    v_mov_b32 v60, -1
    v_mov_b32 v61, -1
    v_mov_b32 v62, -1
    v_mov_b32 v63, -1
    v_lshlrev_b32 v7, 4, v0
    v_cmp_gt_u32 vcc, s49, v0
    s_and_saveexec_b64 s[54:55], vcc
    buffer_store_dwordx4 v[60:63], v7, s[32:35], s48 offen sc1
    s_mov_b64 exec, s[54:55]
    buffer_store_dwordx4 v[60:63], v7, s[32:35], s47 offen sc1
    """)
    a("""
    s_cmp_eq_u32 s3, 0
    s_cbranch_scc0 L_SV_NOB0
    s_barrier
    L_SV_NOB0:
    """)
    stamp(1)
    a("s_waitcnt vmcnt(27)")
    for i in range(10):
        a(f"v_lshlrev_b32 v{60+2*i}, 16, v{20+i}")
        a(f"v_and_b32 v{61+2*i}, 0xffff0000, v{20+i}")
    a("v_add_f32 v80, v60, v61")
    a("v_add_f32 v81, v62, v63")
    for i in range(4, 20, 2):
        a(f"v_add_f32 v80, v80, v{60+i}")
        a(f"v_add_f32 v81, v81, v{61+i}")
    a("v_add_f32 v80, v80, v81")
    def allreduce32(reg, tmp, op="v_add_f32"):
        for r in (8, 4, 2, 1):
            a(f"{op}_dpp {reg}, {reg}, {reg} row_ror:{r} row_mask:0xf bank_mask:0xf")
        a(f"v_mov_b32 {tmp}, {reg}")
        a(f"v_permlane16_swap_b32 {tmp}, {reg}")
        a(f"{op} {reg}, {reg}, {tmp}")
    allreduce32("v80", "v81")
    a(f"s_mov_b32 s53, 0x{f2u(1.0/640):08x}")
    a("v_mul_f32 v80, s53, v80")
    for i in range(20):
        a(f"v_sub_f32 v{60+i}, v{60+i}, v80")
    a("v_mul_f32 v82, v60, v60")
    a("v_mul_f32 v83, v61, v61")
    for i in range(2, 20, 2):
        a(f"v_fmac_f32 v82, v{60+i}, v{60+i}")
        a(f"v_fmac_f32 v83, v{61+i}, v{61+i}")
    a("v_add_f32 v82, v82, v83")
    allreduce32("v82", "v83")
    a("v_mul_f32 v82, s53, v82")
    a(f"""
    v_cvt_pk_bf16_f32 v80, v80, v82
    v_and_b32 v82, 0xffff0000, v80
    v_lshlrev_b32 v80, 16, v80
    v_add_f32 v82, 0x{f2u(1e-5):08x}, v82
    v_cvt_pk_bf16_f32 v82, v82, v82
    v_and_b32 v82, 0xffff0000, v82
    v_sqrt_f32 v82, v82
    v_cvt_pk_bf16_f32 v82, v82, v82
    v_and_b32 v82, 0xffff0000, v82
    v_rcp_f32 v83, v82
    """)
    a("""
    v_readlane_b32 s56, v80, 0
    v_readlane_b32 s57, v80, 32
    v_readlane_b32 s58, v83, 0
    v_readlane_b32 s59, v83, 32
    v_readlane_b32 s60, v82, 0
    v_readlane_b32 s61, v82, 32
    v_cmp_eq_u32 vcc, 0, v4
    v_mov_b32 v80, s57
    v_mov_b32 v81, s56
    v_cndmask_b32 v80, v80, v81, vcc
    v_mov_b32 v83, s59
    v_mov_b32 v81, s58
    v_cndmask_b32 v83, v83, v81, vcc
    v_mov_b32 v82, s61
    v_mov_b32 v81, s60
    v_cndmask_b32 v82, v82, v81, vcc
    s_waitcnt vmcnt(22)
    """)
    for i in range(10):
        a(f"v_lshlrev_b32 v{40+2*i}, 16, v{30+i}")
        a(f"v_and_b32 v{41+2*i}, 0xffff0000, v{30+i}")
    for i in range(20):
        a(f"v_sub_f32 v{40+i}, v{40+i}, v80")
    for i in range(10):
        a(f"v_cvt_pk_bf16_f32 v{30+i}, v{40+2*i}, v{41+2*i}")
    for i in range(10):
        a(f"v_lshlrev_b32 v{40+2*i}, 16, v{30+i}")
        a(f"v_and_b32 v{41+2*i}, 0xffff0000, v{30+i}")
    for i in range(20):
        a(f"v_mul_f32 v{60+i}, v{40+i}, v83")
    for i in range(20):
        a(f"v_fma_f32 v{40+i}, -v{60+i}, v82, v{40+i}")
    for i in range(20):
        a(f"v_fma_f32 v{40+i}, v{40+i}, v83, v{60+i}")
    for i in range(20):
        a(f"v_cvt_pk_bf16_f32 v{40+i}, v{40+i}, v{40+i}")
    stamp(2)
    for t in range(20):
        ar = 12 + 4*(t % 2)
        for r in range(4):
            a(f"v_and_b32 v{ar+r}, v{40+t}, v{8+r}")
        a(f"s_waitcnt vmcnt({21-t})")
        c = "0" if t == 0 else "v[84:87]"
        a(f"v_mfma_f32_16x16x32_bf16 v[84:87], v[{ar}:{ar+3}], {breg(t)}, {c}")
    stamp(14)
    a(f"""
    v_lshlrev_b32 v6, 4, v0
    v_mov_b32 v7, 0
    """)
    if opt.fine:
        stamp(11)
        a("s_nop 7"); a("s_nop 7")
        stamp(12)
    if opt.exp != 6:
        a("global_load_dword v60, v7, s[28:29] sc1")
    else:
        a("v_mov_b32 v60, 1")
    if opt.fine: stamp(10)
    if opt.exp == 7:
        a("s_waitcnt vmcnt(0)")
        stamp(15)
    a("buffer_store_dwordx4 v[84:87], v6, s[32:35], s47 offen sc1")
    if opt.exp != 7: stamp(15)
    a("s_waitcnt vmcnt(0)")
    stamp(3)
    a(f"""
    s_mov_b32 s53, 0
    L_SV_INITW:
    v_readfirstlane_b32 s54, v60
    s_cmp_lg_u32 s54, 0
    s_cbranch_scc1 L_SV_INITOK
    s_add_u32 s53, s53, 1
    s_cmp_gt_u32 s53, 20000
    s_cbranch_scc1 L_SV_INITOK
    s_sleep 2
    global_load_dword v60, v7, s[28:29] sc1
    s_waitcnt vmcnt(0)
    s_branch L_SV_INITW
    L_SV_INITOK:
    s_lshl_b32 s54, s4, 7
    s_lshl_b32 s55, s5, 2
    s_add_u32 s54, s54, s55
    s_add_u32 s54, s54, s50
    s_add_u32 s54, s54, {WS_F}
    v_mov_b32 v60, 1
    s_mov_b64 exec, 1
    buffer_store_dword v60, v7, s[32:35], s54 offen sc1
    s_mov_b64 exec, -1
    s_cmp_eq_u32 s3, 0
    s_cbranch_scc0 L_SV1_MID
    """)
    stamp(4)
    if opt.exp in (2,6,7,13,14):
        if TS: emit_ts_store(a, 13)
        a("s_endpgm")
    a(f"""
    v_and_b32 v60, 7, v0
    v_lshlrev_b32 v60, 2, v60
    s_lshl_b32 s54, s4, 7
    s_add_u32 s54, s54, {WS_F}
    s_mov_b32 s53, 0
    L_SV0_FP:
    buffer_load_dword v61, v60, s[32:35], s54 offen sc1
    s_add_u32 s53, s53, 1
    s_waitcnt vmcnt(0)
    v_cmp_ne_u32 vcc, 1, v61
    s_cmp_gt_u32 s53, 20000
    s_cbranch_scc1 L_SV0_FOK
    s_cbranch_vccz L_SV0_FOK
    s_sleep 2
    s_branch L_SV0_FP
    L_SV0_FOK:
    """)
    stamp(5)
    a(f"""
    v_lshrrev_b32 v60, 5, v0
    v_lshlrev_b32 v60, 12, v60
    v_and_b32 v61, 31, v0
    v_lshl_add_u32 v60, v61, 4, v60
    v_and_b32 v61, 1, v2
    s_lshl_b32 s54, s4, 13
    s_lshr_b32 s55, s5, 2
    s_lshl_b32 s55, s55, 9
    s_add_u32 s54, s54, s55
    s_add_u32 s54, s54, {WS_P1Q}
    """)
    for i in range(4):
        a(f"buffer_load_dwordx4 v[{64+4*i}:{67+4*i}], v60, s[32:35], s54 offen offset:{1024*i} sc1")
    a("s_waitcnt vmcnt(0)")
    for r in range(4):
        a(f"v_add_f32 v{64+r}, v{64+r}, v{68+r}")
        a(f"v_add_f32 v{72+r}, v{72+r}, v{76+r}")
    for r in range(4):
        a(f"v_add_f32 v{64+r}, v{64+r}, v{72+r}")
    for r in range(4):
        a(f"v_mov_b32 v{68+r}, v{64+r}")
    for r in range(4):
        a(f"v_permlane32_swap_b32 v{68+r}, v{64+r}")
    for r in range(4):
        a(f"v_add_f32 v{64+r}, v{64+r}, v{68+r}")
    a(f"""
    v_cvt_pk_bf16_f32 v64, v64, v65
    v_cvt_pk_bf16_f32 v65, v66, v67
    v_lshlrev_b32 v60, 4, v1
    v_lshl_add_u32 v60, v61, 3, v60
    ds_write_b64 v60, v[64:65]
    v_mov_b32 v62, {L_QFLAG}
    v_mov_b32 v63, 1
    s_waitcnt lgkmcnt(0)
    ds_write_b32 v62, v63
    """)
    stamp(6)
    a("s_branch L_SV_TAILLOAD")
    a.label("L_SV1_MID")
    if opt.exp in (2,6,7,13,14):
        if TS: emit_ts_store(a, 13)
        a("s_endpgm")
    a(f"""
    s_cmp_eq_u32 s7, 1
    s_cbranch_scc0 L_SV_TAILLOAD
    ; r = u/5
    s_mul_i32 s56, s6, 52429
    s_lshr_b32 s56, s56, 18
    v_and_b32 v60, 7, v0
    v_lshlrev_b32 v60, 2, v60
    v_bfe_u32 v61, v0, 3, 1
    v_mul_u32_u24 v61, {14*128}, v61
    v_add_u32 v60, v60, v61
    s_lshl_b32 s54, s56, 7
    s_add_u32 s54, s54, {WS_F+32}
    s_mov_b32 s53, 0
    L_SV1_FP:
    buffer_load_dword v61, v60, s[32:35], s54 offen sc1
    s_add_u32 s53, s53, 1
    s_waitcnt vmcnt(0)
    v_cmp_ne_u32 vcc, 1, v61
    s_cmp_gt_u32 s53, 20000
    s_cbranch_scc1 L_SV1_FOK
    s_cbranch_vccz L_SV1_FOK
    s_sleep 2
    s_branch L_SV1_FP
    L_SV1_FOK:
    v_lshlrev_b32 v60, 4, v0
    s_lshl_b32 s54, s56, 13
    s_add_u32 s54, s54, {WS_P1G}
    s_add_u32 s55, s54, {14*8192}
    """)
    a(f"""
    v_lshlrev_b32 v6, 4, v0
    s_add_u32 s57, s54, 4096
    s_add_u32 s58, s55, 4096
    """)
    for ks in range(8):
        so = "s54" if ks < 4 else "s57"
        a(f"buffer_load_dwordx4 v[{20+4*ks}:{23+4*ks}], v6, s[32:35], {so} offen offset:{1024*(ks%4)} sc1")
    for ks in range(8):
        so = "s55" if ks < 4 else "s58"
        a(f"buffer_load_dwordx4 v[{52+4*ks}:{55+4*ks}], v6, s[32:35], {so} offen offset:{1024*(ks%4)} sc1")
    a("s_waitcnt vmcnt(8)")
    for ks in range(1, 8):
        for r in range(4):
            a(f"v_add_f32 v{20+r}, v{20+r}, v{20+4*ks+r}")
    a("s_waitcnt vmcnt(0)")
    for ks in range(1, 8):
        for r in range(4):
            a(f"v_add_f32 v{52+r}, v{52+r}, v{52+4*ks+r}")
    K0 = 0.7978845608028654; K1 = 0.044715
    a(f"""
    v_cvt_pk_bf16_f32 v24, v20, v21
    v_cvt_pk_bf16_f32 v25, v22, v23
    v_cvt_pk_bf16_f32 v26, v52, v53
    v_cvt_pk_bf16_f32 v27, v54, v55
    v_lshlrev_b32 v20, 16, v24
    v_and_b32 v21, 0xffff0000, v24
    v_lshlrev_b32 v22, 16, v25
    v_and_b32 v23, 0xffff0000, v25
    v_lshlrev_b32 v52, 16, v26
    v_and_b32 v53, 0xffff0000, v26
    v_lshlrev_b32 v54, 16, v27
    v_and_b32 v55, 0xffff0000, v27
    s_mov_b32 s57, 0x{f2u(K1):08x}
    s_mov_b32 s58, 0x{f2u(-2.0*K0*1.4426950408889634):08x}
    """)
    for r in range(4):
        a(f"v_mul_f32 v{28+r}, v{20+r}, v{20+r}")
    for r in range(4):
        a(f"v_fma_f32 v{28+r}, v{28+r}, s57, 1.0")
    for r in range(4):
        a(f"v_mul_f32 v{28+r}, v{28+r}, v{20+r}")
    for r in range(4):
        a(f"v_mul_f32 v{28+r}, s58, v{28+r}")
    for r in range(4):
        a(f"v_exp_f32 v{28+r}, v{28+r}")
    for r in range(4):
        a(f"v_add_f32 v{28+r}, 1.0, v{28+r}")
    for r in range(4):
        a(f"v_rcp_f32 v{28+r}, v{28+r}")
    for r in range(4):
        a(f"v_mul_f32 v{28+r}, v{28+r}, v{20+r}")
    for r in range(4):
        a(f"v_cvt_pk_bf16_f32 v{28+r}, v{28+r}, v{28+r}")
    for r in range(4):
        a(f"v_and_b32 v{28+r}, 0xffff0000, v{28+r}")
    for r in range(4):
        a(f"v_mul_f32 v{28+r}, v{28+r}, v{52+r}")
    for r in range(4):
        a(f"v_cvt_pk_bf16_f32 v{28+r}, v{28+r}, v{28+r}")
    a(f"""
    v_lshrrev_b32 v6, 5, v0
    v_lshlrev_b32 v6, 9, v6
    v_lshl_add_u32 v6, v1, 5, v6
    v_and_b32 v7, 1, v2
    v_lshl_add_u32 v6, v7, 4, v6
    v_add_u32 v6, {L_AT}, v6
    ds_write_b128 v6, v[28:31]
    s_branch L_SV_TAILLOAD
    """)
    a.label("L_SV23_EARLY")
    if opt.p23 >= 0: a(f"s_setprio {opt.p23}")
    if opt.touch & 1:
        a("v_mov_b32 v7, 0")
        a("global_load_dword v90, v7, s[28:29] sc1")
    if opt.touch & 2:
        a("v_mov_b32 v7, 0")
        a("s_mov_b32 s44, 0x200000")
        a("s_mov_b32 s52, s30")
        a("s_and_b32 s53, s31, 0xffff")
        a("s_mov_b32 s54, 0x1000000")
        a("s_mov_b32 s55, 0x20000")
        a("buffer_load_dword v91, v7, s[52:55], s44 offen")
    a(f"""
    s_cmp_eq_u32 s2, 0
    s_cbranch_scc0 L_SV23_NOINIT
    s_cmp_eq_u32 s3, 2
    s_cbranch_scc0 L_SV23_NOINIT
    v_mov_b32 v60, 0
    v_mov_b32 v61, 0
    v_mov_b32 v62, 0
    v_mov_b32 v63, 0
    v_lshlrev_b32 v7, 4, v0
    s_mov_b32 s44, {WS_F}
    buffer_store_dwordx4 v[60:63], v7, s[32:35], s44 offen sc1
    buffer_store_dwordx4 v[60:63], v7, s[32:35], s44 offen offset:1024 sc1
    buffer_store_dwordx4 v[60:63], v7, s[32:35], s44 offen offset:2048 sc1
    buffer_store_dwordx4 v[60:63], v7, s[32:35], s44 offen offset:3072 sc1
    s_waitcnt vmcnt(0)
    v_mov_b32 v60, 1
    v_mov_b32 v7, 0
    s_mov_b64 exec, 1
    global_store_dword v7, v60, s[28:29] sc1
    s_mov_b64 exec, -1
    s_branch L_SV_TAILLOAD
    L_SV23_NOINIT:
    """)
    a.label("L_SV_TAILLOAD")
    if opt.exp == 13:
        a("s_barrier")
        if TS: emit_ts_store(a, 13)
        a("s_endpgm")
    if opt.exp == 14:
        for _ in range(4): a("s_sleep 100")
        if TS: emit_ts_store(a, 13)
        a("s_endpgm")
    if opt.exp == 8:
        a("s_cmp_ge_u32 s3, 2")
        a("s_cbranch_scc1 L_END")
    if opt.exp == 9:
        a("s_cmp_ge_u32 s3, 2")
        a("s_cbranch_scc1 L_SV_BAR2")
    if opt.exp in (2,6,7):
        if TS: emit_ts_store(a, 13)
        a("s_endpgm")
    stamp(7)
    a(f"""
    s_cmp_ge_u32 s7, 2
    s_cbranch_scc1 L_SV_BAR2
    s_mul_i32 s56, s6, 52429
    s_lshr_b32 s56, s56, 18
    s_mul_i32 s57, s56, 5
    s_sub_u32 s57, s6, s57
    s_cmp_eq_u32 s7, 0
    s_cselect_b32 s40, s16, s24
    s_cselect_b32 s41, s17, s25
    s_mov_b32 s42, {4096*1280}
    s_cselect_b32 s42, s42, {1728*1280}
    s_cselect_b32 s56, s4, s56
    s_cselect_b32 s57, s5, s57
    s_and_b32 s41, s41, 0xffff
    s_mov_b32 s43, 0x20000
    s_lshl_b32 s58, s56, 7
    s_lshl_b32 s59, s3, 5
    s_add_u32 s58, s58, s59
    s_mul_i32 s58, s58, 1280
    s_lshl_b32 s59, s57, 8
    s_add_u32 s58, s58, s59
    s_add_u32 s59, s58, 5120
    v_mul_u32_u24 v6, {8*1280}, v2
    v_lshl_add_u32 v6, v1, 4, v6
    s_cmp_eq_u32 s7, 1
    s_cselect_b32 s60, s56, 0
    s_cmp_eq_u32 s60, 13
    s_cselect_b32 s60, s3, 0
    s_cmp_ge_u32 s60, 2
    s_cbranch_scc0 L_SV_TL2
    v_mov_b32 v6, 0x7ffffff0
    L_SV_TL2:
    v_mov_b32 v62, {L_ISS}
    {"s_mov_b32 s42, 0" if opt.exp in (21, 22) else ""}
    L_SV_ISSW:
    ds_read_b32 v63, v62
    s_waitcnt lgkmcnt(0)
    v_readfirstlane_b32 s60, v63
    s_cmp_ge_u32 s60, 8
    s_cbranch_scc1 L_SV_ISSOK
    s_sleep {opt.sleep}
    s_branch L_SV_ISSW
    L_SV_ISSOK:
    """)
    for t in range(8):
        so = "s58" if t < 4 else "s59"
        a(f"buffer_load_dwordx4 a[{4*t}:{4*t+3}], v6, s[40:43], {so} offen offset:{1280*(t%4)} nt")
    a.label("L_SV_BAR2")
    stamp(8)
    a("""
    s_waitcnt lgkmcnt(0)
    s_barrier
    """)
    stamp(9)
    a(f"""
    s_cmp_eq_u32 s3, 0
    s_cbranch_scc0 L_SV_POSTPUB
    v_mov_b32 v60, {L_ML}
    ds_read_b128 v[20:23], v60
    ds_read_b128 v[24:27], v60 offset:16
    ds_read_b128 v[28:31], v60 offset:32
    ds_read_b128 v[32:35], v60 offset:48
    v_lshlrev_b32 v61, 3, v0
    """)
    for w in range(8):
        a(f"ds_read_b64 v[{40+2*w}:{41+2*w}], v61 offset:{L_OW+512*w}")
    a("s_waitcnt lgkmcnt(8)")
    a("""
    v_max3_f32 v36, v20, v22, v24
    v_max3_f32 v37, v26, v28, v30
    v_max3_f32 v36, v36, v32, v34
    v_max_f32 v36, v36, v37
    """)
    for w in range(8):
        a(f"v_sub_f32 v{20+2*w}, v{20+2*w}, v36")
    for w in range(8):
        a(f"v_exp_f32 v{20+2*w}, v{20+2*w}")
    a("v_mul_f32 v37, v20, v21")
    for w in range(1, 8):
        a(f"v_fmac_f32 v37, v{20+2*w}, v{21+2*w}")
    a("s_waitcnt lgkmcnt(0)")
    a("v_mul_f32 v38, v20, v40")
    a("v_mul_f32 v39, v20, v41")
    for w in range(1, 8):
        a(f"v_fmac_f32 v38, v{20+2*w}, v{40+2*w}")
        a(f"v_fmac_f32 v39, v{20+2*w}, v{41+2*w}")
    a(f"""
    v_min_u32 v36, -2, v36
    v_min_u32 v37, -2, v37
    v_min_u32 v38, -2, v38
    v_min_u32 v39, -2, v39
    s_mul_i32 s48, s2, {OPSTR}
    s_add_u32 s48, s48, {WS_OP}
    buffer_store_dwordx2 v[38:39], v61, s[32:35], s48 offen sc1
    v_mov_b32 v60, 512
    s_mov_b64 exec, 1
    buffer_store_dwordx2 v[36:37], v60, s[32:35], s48 offen sc1
    s_mov_b64 exec, -1
    L_SV_POSTPUB:
    """)
    stamp(10)
    a("""
    s_cmp_eq_u32 s7, 0
    s_cbranch_scc1 L_SV_OGATH
    s_cmp_eq_u32 s7, 1
    s_cbranch_scc1 L_SV_GEMV2
    s_cmp_eq_u32 s7, 2
    s_cbranch_scc0 L_SV_EXIT
    s_cmp_ge_u32 s3, 2
    s_cbranch_scc1 L_FINAL
    s_branch L_SV_EXIT
    """)
    a.label("L_SV_OGATH")
    a(f"""
    v_bfe_u32 v60, v0, 3, 1
    v_mul_u32_u24 v61, {4*OPSTR}, v60
    v_and_b32 v62, 7, v0
    v_lshl_add_u32 v62, v2, 3, v62
    v_lshl_add_u32 v63, v62, 2, v61
    v_and_b32 v64, 3, v0
    v_mul_u32_u24 v64, {OPSTR}, v64
    v_add_u32 v64, v64, v61
    s_mul_i32 s48, s4, {8*OPSTR}
    s_add_u32 s48, s48, {WS_OP}
    s_add_u32 s49, s48, 512
    s_lshl_b32 s50, s3, 7
    s_add_u32 s48, s48, s50
    v_lshlrev_b32 v65, 9, v60
    v_lshl_add_u32 v65, v62, 2, v65
    s_add_u32 s50, s50, {L_AT}
    v_add_u32 v65, s50, v65
    s_mov_b32 s53, 0
    L_SV_OP:
    buffer_load_dwordx2 v[20:21], v64, s[32:35], s49 offen sc1
    buffer_load_dword v22, v63, s[32:35], s48 offen sc1
    buffer_load_dword v23, v63, s[32:35], s48 offen offset:{OPSTR} sc1
    buffer_load_dword v24, v63, s[32:35], s48 offen offset:{2*OPSTR} sc1
    buffer_load_dword v25, v63, s[32:35], s48 offen offset:{3*OPSTR} sc1
    s_add_u32 s53, s53, 1
    s_waitcnt vmcnt(0)
    v_max3_u32 v26, v20, v21, v22
    v_max3_u32 v27, v23, v24, v25
    v_max_u32 v26, v26, v27
    v_cmp_eq_u32 vcc, -1, v26
    s_cmp_gt_u32 s53, 20000
    s_cbranch_scc1 L_SV_OOK
    s_cbranch_vccnz L_SV_OP
    L_SV_OOK:
    """)
    stamp(11)
    a(f"""
    v_max_f32_dpp v26, v20, v20 quad_perm:[1,0,3,2] row_mask:0xf bank_mask:0xf
    v_max_f32_dpp v26, v26, v26 quad_perm:[2,3,0,1] row_mask:0xf bank_mask:0xf
    v_sub_f32 v20, v20, v26
    v_exp_f32 v20, v20
    v_mul_f32 v21, v20, v21
    v_add_f32_dpp v27, v21, v21 quad_perm:[1,0,3,2] row_mask:0xf bank_mask:0xf
    v_add_f32_dpp v27, v27, v27 quad_perm:[2,3,0,1] row_mask:0xf bank_mask:0xf
    v_rcp_f32 v27, v27
    v_mul_f32 v20, v20, v27
    v_mul_f32_dpp v28, v20, v22 quad_perm:[0,0,0,0] row_mask:0xf bank_mask:0xf
    v_fmac_f32_dpp v28, v20, v23 quad_perm:[1,1,1,1] row_mask:0xf bank_mask:0xf
    v_fmac_f32_dpp v28, v20, v24 quad_perm:[2,2,2,2] row_mask:0xf bank_mask:0xf
    v_fmac_f32_dpp v28, v20, v25 quad_perm:[3,3,3,3] row_mask:0xf bank_mask:0xf
    v_cvt_pk_bf16_f32 v28, v28, v28
    ds_write_b32 v65, v28
    """)
    a.label("L_SV_GEMV2")
    a(f"""
    v_bfe_u32 v60, v0, 3, 1
    v_lshlrev_b32 v60, 9, v60
    v_lshl_add_u32 v60, v2, 5, v60
    s_lshl_b32 s50, s3, 7
    s_add_u32 s50, s50, {L_AT}
    v_add_u32 v60, s50, v60
    ds_read_b128 v[40:43], v60
    ds_read_b128 v[44:47], v60 offset:16
    s_waitcnt lgkmcnt(0)
    """)
    for t in range(8):
        ar = 12 + 4*(t % 2)
        for r in range(4):
            a(f"v_and_b32 v{ar+r}, v{40+t}, v{8+r}")
        a(f"s_waitcnt vmcnt({7-t})")
        c = "0" if t == 0 else "v[84:87]"
        a(f"v_mfma_f32_16x16x32_bf16 v[84:87], v[{ar}:{ar+3}], a[{4*t}:{4*t+3}], {c}")
    a(f"""
    v_lshlrev_b32 v60, 4, v0
    s_lshl_b32 s50, s3, 10
    s_add_u32 s50, s50, {L_YR}
    v_add_u32 v61, s50, v60
    ds_write_b128 v61, v[84:87]
    s_waitcnt lgkmcnt(0)
    s_barrier
    s_cmp_eq_u32 s3, 0
    s_cbranch_scc0 L_SV_EXIT
    ds_read_b128 v[20:23], v60 offset:{L_YR}
    ds_read_b128 v[24:27], v60 offset:{L_YR+1024}
    ds_read_b128 v[28:31], v60 offset:{L_YR+2048}
    ds_read_b128 v[32:35], v60 offset:{L_YR+3072}
    ; y slot
    s_mul_i32 s48, s4, 5
    s_add_u32 s48, s48, s5
    s_add_u32 s49, s6, 160
    s_cmp_eq_u32 s7, 0
    s_cselect_b32 s48, s48, s49
    s_lshl_b32 s48, s48, 10
    s_add_u32 s48, s48, {WS_Y}
    v_lshlrev_b32 v6, 4, v0
    s_waitcnt lgkmcnt(0)
    """)
    for r in range(4):
        a(f"v_add_f32 v{20+r}, v{20+r}, v{24+r}")
        a(f"v_add_f32 v{28+r}, v{28+r}, v{32+r}")
    for r in range(4):
        a(f"v_add_f32 v{20+r}, v{20+r}, v{28+r}")
    for r in range(4):
        a(f"v_min_u32 v{20+r}, -2, v{20+r}")
    a("buffer_store_dwordx4 v[20:23], v6, s[32:35], s48 offen sc1")
    stamp(12)
    a("s_branch L_SV_EXIT")
    a.label("L_FINAL")
    a(f"""
    s_sub_u32 s44, s6, 70
    s_lshl_b32 s44, s44, 1
    s_add_u32 s44, s44, s3
    s_sub_u32 s44, s44, 2
    s_lshr_b32 s45, s44, 3
    s_bfe_u32 s46, s44, 0x10002
    s_and_b32 s47, s44, 3
    v_lshrrev_b32 v60, 1, v0
    v_lshlrev_b32 v60, 7, v60
    v_and_b32 v61, 1, v0
    v_lshl_add_u32 v60, v61, 4, v60
    s_mov_b32 s54, {WS_F+32}
    s_mov_b32 s53, 0
    L_FN_FP:
    buffer_load_dwordx4 v[20:23], v60, s[32:35], s54 offen sc1
    s_add_u32 s53, s53, 1
    s_waitcnt vmcnt(0)
    v_and_b32 v20, v20, v21
    v_and_b32 v22, v22, v23
    v_and_b32 v20, v20, v22
    v_cmp_ne_u32 vcc, 1, v20
    s_cmp_gt_u32 s53, 20000
    s_cbranch_scc1 L_FN_FOK
    s_cbranch_vccz L_FN_FOK
    s_sleep 2
    s_branch L_FN_FP
    L_FN_FOK:
    s_mov_b32 s36, s8
    s_and_b32 s37, s9, 0xffff
    s_mov_b32 s38, 2560
    s_mov_b32 s39, 0x20000
    s_mov_b32 s40, s26
    s_and_b32 s41, s27, 0xffff
    s_mov_b32 s42, 2560
    s_mov_b32 s43, 0x20000
    s_mul_i32 s48, s46, 1280
    s_lshl_b32 s49, s45, 8
    s_add_u32 s48, s48, s49
    s_and_b32 s49, s47, 1
    s_lshl_b32 s49, s49, 7
    s_add_u32 s48, s48, s49
    s_lshr_b32 s49, s47, 1
    s_lshl_b32 s49, s49, 3
    s_add_u32 s48, s48, s49
    v_and_b32 v61, 7, v0
    v_lshlrev_b32 v62, 4, v61
    buffer_load_dwordx2 v[50:51], v62, s[36:39], s48 offen
    v_lshrrev_b32 v60, 3, v0
    v_mul_u32_u24 v63, 5120, v60
    v_lshl_add_u32 v63, v61, 4, v63
    v_mov_b32 v64, 0x7ffffff0
    v_cmp_gt_u32 vcc, 6, v60
    v_cndmask_b32 v64, v64, v63, vcc
    s_lshl_b32 s49, s45, 10
    s_lshl_b32 s50, s46, 9
    s_add_u32 s49, s49, s50
    s_lshl_b32 s50, s47, 7
    s_add_u32 s49, s49, s50
    s_add_u32 s49, s49, {WS_Y}
    s_add_u32 s50, s49, {160*1024}
    s_add_u32 s51, s50, 40960
    s_add_u32 s55, s49, 40960
    s_add_u32 s56, s49, {2*40960}
    s_add_u32 s57, s49, {3*40960}
    s_mov_b32 s53, 0
    L_FN_P1:
    buffer_load_dwordx4 v[20:23], v63, s[32:35], s50 offen sc1
    buffer_load_dwordx4 v[24:27], v64, s[32:35], s51 offen sc1
    s_add_u32 s53, s53, 1
    s_waitcnt vmcnt(0)
    v_max3_u32 v28, v20, v21, v22
    v_max3_u32 v29, v23, v24, v25
    v_max3_u32 v28, v28, v26, v27
    v_max_u32 v28, v28, v29
    v_cmp_eq_u32 vcc, -1, v28
    s_cmp_gt_u32 s53, 20000
    s_cbranch_scc1 L_FN_OK1
    s_cbranch_vccnz L_FN_P1
    L_FN_OK1:
    """)
    def xlane_reduce(base, tmp):
        for r in range(4):
            a(f"v_add_f32_dpp v{base+r}, v{base+r}, v{base+r} row_ror:8 row_mask:0xf bank_mask:0xf")
        for r in range(4):
            a(f"v_mov_b32 v{tmp+r}, v{base+r}")
        for r in range(4):
            a(f"v_permlane16_swap_b32 v{tmp+r}, v{base+r}")
        for r in range(4):
            a(f"v_add_f32 v{base+r}, v{base+r}, v{tmp+r}")
        for r in range(4):
            a(f"v_mov_b32 v{tmp+r}, v{base+r}")
        for r in range(4):
            a(f"v_permlane32_swap_b32 v{tmp+r}, v{base+r}")
        for r in range(4):
            a(f"v_add_f32 v{base+r}, v{base+r}, v{tmp+r}")
    for r in range(4):
        a(f"v_add_f32 v{20+r}, v{20+r}, v{24+r}")
    xlane_reduce(20, 24)
    a(f"""
    v_cvt_pk_bf16_f32 v24, v20, v21
    v_cvt_pk_bf16_f32 v25, v22, v23
    v_lshlrev_b32 v20, 16, v24
    v_and_b32 v21, 0xffff0000, v24
    v_lshlrev_b32 v22, 16, v25
    v_and_b32 v23, 0xffff0000, v25
    s_mov_b32 s58, 0x{f2u(-1.4426950408889634):08x}
    """)
    for r in range(4):
        a(f"v_mul_f32 v{24+r}, s58, v{20+r}")
    for r in range(4):
        a(f"v_exp_f32 v{24+r}, v{24+r}")
    for r in range(4):
        a(f"v_add_f32 v{24+r}, 1.0, v{24+r}")
    for r in range(4):
        a(f"v_rcp_f32 v{24+r}, v{24+r}")
    for r in range(4):
        a(f"v_mul_f32 v{24+r}, v{24+r}, v{20+r}")
    a(f"""
    v_cvt_pk_bf16_f32 v52, v24, v25
    v_cvt_pk_bf16_f32 v53, v26, v27
    v_lshlrev_b32 v54, 16, v52
    v_and_b32 v55, 0xffff0000, v52
    v_lshlrev_b32 v56, 16, v53
    v_and_b32 v57, 0xffff0000, v53
    v_lshlrev_b32 v40, 16, v50
    v_and_b32 v41, 0xffff0000, v50
    v_lshlrev_b32 v42, 16, v51
    v_and_b32 v43, 0xffff0000, v51
    s_mov_b32 s53, 0
    L_FN_P2:
    buffer_load_dwordx4 v[20:23], v63, s[32:35], s49 offen sc1
    buffer_load_dwordx4 v[24:27], v63, s[32:35], s55 offen sc1
    buffer_load_dwordx4 v[28:31], v63, s[32:35], s56 offen sc1
    buffer_load_dwordx4 v[32:35], v63, s[32:35], s57 offen sc1
    s_add_u32 s53, s53, 1
    s_waitcnt vmcnt(0)
    v_max3_u32 v36, v20, v21, v22
    v_max3_u32 v37, v23, v24, v25
    v_max3_u32 v38, v26, v27, v28
    v_max3_u32 v39, v29, v30, v31
    v_max3_u32 v36, v36, v32, v33
    v_max3_u32 v37, v37, v34, v35
    v_max3_u32 v36, v36, v38, v39
    v_max_u32 v36, v36, v37
    v_cmp_eq_u32 vcc, -1, v36
    s_cmp_gt_u32 s53, 20000
    s_cbranch_scc1 L_FN_OK2
    s_cbranch_vccnz L_FN_P2
    L_FN_OK2:
    """)
    stamp(11)
    for r in range(4):
        a(f"v_add_f32 v{20+r}, v{20+r}, v{24+r}")
        a(f"v_add_f32 v{28+r}, v{28+r}, v{32+r}")
    for r in range(4):
        a(f"v_add_f32 v{20+r}, v{20+r}, v{28+r}")
    xlane_reduce(20, 24)
    a(f"""
    v_cvt_pk_bf16_f32 v24, v20, v21
    v_cvt_pk_bf16_f32 v25, v22, v23
    v_lshlrev_b32 v20, 16, v24
    v_and_b32 v21, 0xffff0000, v24
    v_lshlrev_b32 v22, 16, v25
    v_and_b32 v23, 0xffff0000, v25
    """)
    for r in range(4):
        a(f"v_mul_f32 v{20+r}, v{20+r}, v{54+r}")
    a(f"""
    v_cvt_pk_bf16_f32 v24, v20, v21
    v_cvt_pk_bf16_f32 v25, v22, v23
    v_lshlrev_b32 v20, 16, v24
    v_and_b32 v21, 0xffff0000, v24
    v_lshlrev_b32 v22, 16, v25
    v_and_b32 v23, 0xffff0000, v25
    """)
    for r in range(4):
        a(f"v_add_f32 v{20+r}, v{20+r}, v{40+r}")
    a(f"""
    v_cvt_pk_bf16_f32 v24, v20, v21
    v_cvt_pk_bf16_f32 v25, v22, v23
    s_mov_b64 exec, 0xff
    buffer_store_dwordx2 v[24:25], v62, s[40:43], s48 offen
    s_mov_b64 exec, -1
    """)
    stamp(12)
    a.label("L_SV_EXIT")
    if TS:
        emit_ts_store(a, 13)
    a.label("L_END")
    a("s_endpgm")
    a.raw(".p2align 6")
    a.label("L_CODE_END")
    a.raw("    s_endpgm")
    a.raw(".fill 256, 4, 0xBF810000")
    return a

def emit_ts_store(a, idx):
    a(f"s_memrealtime s[{64+2*idx}:{65+2*idx}]")
    a(f"""
    s_waitcnt lgkmcnt(0) vmcnt(0)
    s_mov_b32 s52, s30
    s_and_b32 s53, s31, 0xffff
    s_mov_b32 s54, 0x1000000
    s_mov_b32 s55, 0x20000
    s_mul_i32 s56, s2, 12
    s_add_u32 s56, s56, s3
    s_lshl_b32 s56, s56, 6
    s_add_u32 s56, s56, {WS_TS}
    s_mov_b64 exec, 1
    v_mov_b32 v99, 0
    """)
    if HWID: a("s_getreg_b32 s80, hwreg(HW_REG_HW_ID)")
    for i in range(16):
        a(f"v_mov_b32 v98, s{64+2*i}")
        a(f"buffer_store_dword v98, v99, s[52:55], s56 offen offset:{4*i}")
    a("s_mov_b64 exec, -1")

HEADER = open('cdna_kernels/%s.s.ref' % NAME).read().split('; Override launch geometry')[0]

def build(opt):
    a = gen(opt)
    body = a.text()
    src = HEADER + f"""; Override launch geometry by editing the next line (default: block=256,
; grid=ceil(out_elems/256), lds=0). Harness parses it; keep it on one line.
; @launch grid=(256,1,1) block=(768,1,1) lds={LDS_SIZE}
.amdgcn_target "amdgcn-amd-amdhsa--gfx950"
.text
.globl {NAME}_kernel
.p2align 8
.type {NAME}_kernel,@function
{NAME}_kernel:
{body}
.section .rodata,"a"
.p2align 6
.amdhsa_kernel {NAME}_kernel
  .amdhsa_next_free_vgpr 168
  .amdhsa_next_free_sgpr 102
  .amdhsa_accum_offset 100
  .amdhsa_group_segment_fixed_size 0
  .amdhsa_kernarg_size 96
  .amdhsa_user_sgpr_count 2
  .amdhsa_user_sgpr_kernarg_segment_ptr 1
  .amdhsa_system_sgpr_workgroup_id_x 1
.end_amdhsa_kernel
"""
    return src, a

if __name__ == "__main__":
    ap = argparse.ArgumentParser()
    ap.add_argument("-o", default=f"cdna_kernels/{NAME}.s")
    ap.add_argument("--ts", action="store_true")
    ap.add_argument("--dump_scores", action="store_true")
    ap.add_argument("--exp", type=int, default=0)
    ap.add_argument("--sleep", type=int, default=4)
    ap.add_argument("--nopf", action="store_true")
    ap.add_argument("--p23", type=int, default=-1)
    ap.add_argument("--touch", type=int, default=0)
    ap.add_argument("--fine", action="store_true")
    ap.add_argument("--depth", type=int, default=4)
    ap.add_argument("--xv", type=int, default=8)
    opt = ap.parse_args()
    HWID = opt.fine
    import subprocess, re, os, tempfile
    def code_size(src):
        with tempfile.TemporaryDirectory() as d:
            p = os.path.join(d, "t.s"); o = os.path.join(d, "t.o")
            open(p, "w").write(src)
            r = subprocess.run(["clang", "-x", "assembler", "-target", "amdgcn-amd-amdhsa", "-mcpu=gfx950", "-c", p, "-o", o], capture_output=True, text=True)
            assert r.returncode == 0, r.stderr[:3000]
            out = subprocess.run(["llvm-readelf", "-s", o], capture_output=True, text=True).stdout
            for line in out.splitlines():
                if line.strip().endswith("L_CODE_END"):
                    return int(line.split()[1], 16)
        raise RuntimeError("no L_CODE_END")
    opt.pfn = 16
    src, a = build(opt)
    sz = code_size(src)
    opt.pfn = (sz + 1023) // 1024
    src, a = build(opt)
    sz = code_size(src)
    assert opt.pfn * 1024 <= sz + 1024 + 64
    open(opt.o, "w").write(src)
    print("written", opt.o, "lines", len(a.lines), "nops", a.nops, "code bytes", sz, "pfn", opt.pfn)
```

```python
import sys, argparse
from asmgen import Asm

NAME = "recurrent_scan__sliding_block_cached__geglu_ffn__decode"

WS_F   = 0x00000
WS_P1Q = 0x10000
WS_P1G = 0x50000
WS_OP  = 0x90000
WS_Y   = 0xC0000
WS_SIZE= 0x100000
WS_TS  = 0x200000
OPSTR  = 640
L_QT   = 0x000
L_QFLAG= 0x100
L_ISS  = 0x104
L_AT   = 0x200
L_ML   = 0x600
L_OW   = 0x800
L_YR   = 0x1800
LDS_SIZE = 0x2800

SENT = 0xFFFFFFFF
HWID = False
C_SCALE = 0.08838834764831845 * 1.4426950408889634
import struct
def f2u(f): return struct.unpack('<I', struct.pack('<f', f))[0]

def gen(opt):
    a = Asm()
    TS = opt.ts
    def stamp(idx):
        if TS:
            a(f"s_memrealtime s[{64+2*idx}:{65+2*idx}]")
    if TS: a("s_memrealtime s[64:65]")
    a("""
    s_load_dwordx16 s[8:23], s[0:1], 0
    s_load_dwordx8 s[24:31], s[0:1], 64
    s_cmp_ge_u32 s2, 256
    s_cbranch_scc1 L_END
    v_lshrrev_b32 v2, 6, v0
    v_and_b32 v0, 63, v0
    v_readfirstlane_b32 s3, v2
    s_lshr_b32 s4, s2, 3
    s_and_b32 s5, s2, 7
    v_and_b32 v1, 15, v0
    v_lshrrev_b32 v2, 4, v0
    v_and_b32 v3, 7, v0
    v_and_b32 v4, 1, v0
    v_mov_b32 v5, 0xffff
    v_lshlrev_b32 v4, 4, v4
    v_lshlrev_b32 v5, v4, v5
    v_lshrrev_b32 v3, 1, v3
    """)
    for r in range(4):
        a(f"v_cmp_eq_u32 vcc, {r}, v3")
        a(f"v_cndmask_b32 v{8+r}, 0, v5, vcc")
    if not opt.nopf:
        a("""
        s_cmp_eq_u32 s3, 3
        s_cbranch_scc0 L_NOPF
        s_getpc_b64 s[50:51]
        L_PCREF:
        s_sub_u32 s50, s50, L_PCREF-%s_kernel
        s_subb_u32 s51, s51, 0
        v_lshlrev_b32 v6, 4, v0
        """ % NAME)
        for i in range(opt.pfn):
            if i % 4 == 0 and i > 0:
                a("s_add_u32 s50, s50, 4096")
                a("s_addc_u32 s51, s51, 0")
            a(f"global_load_dwordx4 v[92:95], v6, s[50:51] offset:{(i%4)*1024}")
        a.label("L_NOPF")
    a("""
    v_mov_b32 v6, 0
    v_mov_b32 v7, 0
    v_mov_b32 v12, %d
    ds_write_b64 v12, v[6:7]
    s_waitcnt lgkmcnt(0)
    s_mov_b32 s32, s30
    s_and_b32 s33, s31, 0xffff
    s_mov_b32 s34, %d
    s_mov_b32 s35, 0x20000
    s_cmp_eq_u32 s3, 0
    s_cbranch_scc1 L_SERVICE
    s_barrier
    s_cmp_lt_u32 s3, 4
    s_cbranch_scc1 L_SERVICE
    """ % (L_QFLAG, WS_SIZE))
    a("""
    s_sub_u32 s6, s3, 4
    s_mov_b32 s36, s10
    s_and_b32 s37, s11, 0xffff
    s_mov_b32 s38, 0x8000000
    s_mov_b32 s39, 0x20000
    s_mov_b32 s40, s12
    s_and_b32 s41, s13, 0xffff
    s_mov_b32 s42, 0x8000000
    s_mov_b32 s43, 0x20000
    s_lshr_b32 s44, s5, 2
    s_lshl_b32 s44, s44, 5
    s_add_u32 s44, s44, s4
    s_lshl_b32 s44, s44, 21
    s_and_b32 s45, s5, 3
    s_lshl_b32 s45, s45, 17
    s_add_u32 s44, s44, s45
    s_lshl_b32 s45, s6, 12
    s_add_u32 s44, s44, s45
    s_add_u32 s44, s44, 0x180000
    s_add_u32 s45, s44, 0x8000
    s_add_u32 s46, s44, 0x10000
    s_add_u32 s47, s44, 0x18000
    v_lshlrev_b32 v3, 4, v0
    v_lshlrev_b32 v12, 4, v1
    v_mov_b32 v13, %d
    v_mov_b32 v14, 1
    """ % L_QFLAG)
    KB = 36
    D = opt.depth; X = opt.xv
    def kload(jj): a(f"buffer_load_dwordx4 v[{KB+4*jj}:{KB+4*jj+3}], v3, s[36:39], s{44+jj//4} offen offset:{(jj%4)*1024} {opt.kvflag}")
    def vload(jj): a(f"buffer_load_dwordx4 a[{4*jj}:{4*jj+3}], v3, s[40:43], s{44+jj//4} offen offset:{(jj%4)*1024} {opt.kvflag}")
    n = 0
    for jj in range(16):
        if n >= D: a(f"s_waitcnt vmcnt({D-1})")
        kload(jj); n += 1
    for jj in range(X):
        if n >= D: a(f"s_waitcnt vmcnt({D-1})")
        vload(jj); n += 1
    def issued_signal():
        stamp(1)
        a("""
        s_mov_b64 exec, 1
        ds_add_u32 v13, v14 offset:4
        s_mov_b64 exec, -1
        """)
    if X == 16: issued_signal()
    a(f"""
    L_ST_QW:
    ds_read_b32 v15, v13
    s_waitcnt lgkmcnt(0)
    v_readfirstlane_b32 s48, v15
    s_cmp_lg_u32 s48, {0 if opt.exp not in (1,2,3,6,7,8,9,13,14) else 12345}
    s_cbranch_scc1 L_ST_QGO
    s_sleep {opt.sleep}
    s_branch L_ST_QW
    L_ST_QGO:
    ds_read_b128 v[4:7], v12
    s_waitcnt lgkmcnt(0)
    """)
    stamp(2)
    nv = X
    rem = 16 - X
    for jj in range(16):
        k = KB + 4*jj
        need = (15 - jj) + nv
        if need < D: a(f"s_waitcnt vmcnt({need})")
        a(f"v_dot2_f32_bf16 v{k}, v{k}, v4, 0")
        a(f"v_dot2_f32_bf16 v{k}, v{k+1}, v5, v{k}")
        a(f"v_dot2_f32_bf16 v{k}, v{k+2}, v6, v{k}")
        a(f"v_dot2_f32_bf16 v{k}, v{k+3}, v7, v{k}")
        if rem and nv < 16 and ((jj + 1) * rem) // 16 > (nv - X):
            a(f"s_waitcnt vmcnt({D-1})")
            vload(nv); nv += 1
            if nv == 16: issued_signal()
    assert nv == 16
    P = lambda j: f"v{KB+4*j}"
    for j in range(8):
        a(f"v_add_f32_dpp {P(j)}, {P(j)}, {P(j)} row_ror:8 row_mask:0xf bank_mask:0x3")
    for j in range(8):
        a(f"v_add_f32_dpp {P(j)}, {P(j+8)}, {P(j+8)} row_ror:8 row_mask:0xf bank_mask:0xc")
    for j in range(4):
        a(f"v_add_f32_dpp {P(j)}, {P(j)}, {P(j)} row_shl:4 row_mask:0xf bank_mask:0x5")
    for j in range(4):
        a(f"v_add_f32_dpp {P(j)}, {P(j+4)}, {P(j+4)} row_shr:4 row_mask:0xf bank_mask:0xa")
    for j in range(4):
        a(f"v_add_f32_dpp {P(j)}, {P(j)}, {P(j)} quad_perm:[1,0,3,2] row_mask:0xf bank_mask:0xf")
    for j in range(4):
        a(f"v_add_f32_dpp {P(j)}, {P(j)}, {P(j)} quad_perm:[2,3,0,1] row_mask:0xf bank_mask:0xf")
    if opt.dump_scores:
        a(f"""
        s_mov_b32 s52, s30
        s_and_b32 s53, s31, 0xffff
        s_mov_b32 s54, 0x1000000
        s_mov_b32 s55, 0x20000
        s_lshl_b32 s56, s2, 3
        s_add_u32 s56, s56, s6
        s_lshl_b32 s56, s56, 10
        s_add_u32 s56, s56, 0x300000
        v_lshlrev_b32 v15, 2, v0
        """)
        for q in range(4):
            a(f"buffer_store_dword {P(q)}, v15, s[52:55], s56 offen offset:{q*256}")
    a(f"""
    v_max_f32 v16, {P(0)}, {P(1)}
    v_max3_f32 v16, {P(2)}, {P(3)}, v16
    v_max_f32_dpp v16, v16, v16 row_ror:4 row_mask:0xf bank_mask:0xf
    v_max_f32_dpp v16, v16, v16 row_ror:8 row_mask:0xf bank_mask:0xf
    v_mov_b32 v17, v16
    v_permlane16_swap_b32 v17, v16
    v_max_f32 v16, v16, v17
    v_mov_b32 v17, v16
    v_permlane32_swap_b32 v17, v16
    v_max_f32 v16, v16, v17
    s_mov_b32 s48, 0x{f2u(C_SCALE):08x}
    v_mul_f32 v16, s48, v16
    """)
    for q in range(4):
        a(f"v_fma_f32 {P(q)}, {P(q)}, s48, -v16")
    for q in range(4):
        a(f"v_exp_f32 {P(q)}, {P(q)}")
    a(f"""
    v_add_f32 v17, {P(0)}, {P(1)}
    v_add_f32 v18, {P(2)}, {P(3)}
    """)
    for q in range(4):
        a(f"v_cvt_pk_bf16_f32 v{24+q}, {P(q)}, {P(q)}")
    a(f"""
    v_add_f32 v17, v17, v18
    v_add_f32_dpp v17, v17, v17 row_ror:4 row_mask:0xf bank_mask:0xf
    v_add_f32_dpp v17, v17, v17 row_ror:8 row_mask:0xf bank_mask:0xf
    v_mov_b32 v18, v17
    v_permlane16_swap_b32 v18, v17
    v_add_f32 v17, v17, v18
    v_mov_b32 v18, v17
    v_permlane32_swap_b32 v18, v17
    v_add_f32 v17, v17, v18
    """)
    a(f"""
    s_lshl_b32 s49, s6, 3
    s_add_u32 s49, s49, {L_ML}
    v_mov_b32 v18, s49
    s_mov_b64 exec, 1
    ds_write_b64 v18, v[16:17]
    s_mov_b64 exec, -1
    """)
    stamp(3)
    for jj in range(16):
        q = jj % 4; bank = jj // 4
        ar = 28 + 4*(jj % 2)
        for r in range(4):
            a(f"v_and_b32_dpp v{ar+r}, v{24+q}, v{8+r} row_newbcast:{4*bank} row_mask:0xf bank_mask:0xf")
        a(f"s_waitcnt vmcnt({15-jj})")
        c = "0" if jj == 0 else "v[20:23]"
        a(f"v_mfma_f32_16x16x32_bf16 v[20:23], v[{ar}:{ar+3}], a[{4*jj}:{4*jj+3}], {c}")
    stamp(4)
    a(f"""
    v_lshlrev_b32 v12, 5, v1
    v_lshl_add_u32 v12, v2, 4, v12
    s_lshl_b32 s49, s6, 9
    s_add_u32 s49, s49, {L_OW}
    v_add_u32 v12, s49, v12
    s_mov_b32 exec_hi, 0
    ds_write_b128 v12, v[20:23]
    s_mov_b32 exec_hi, -1
    s_waitcnt lgkmcnt(0)
    s_barrier
    """)
    if TS:
        emit_ts_store(a, 5)
    a("s_endpgm")

    a.label("L_SERVICE")
    if opt.exp == 1:
        if TS: emit_ts_store(a, 13)
        a("s_endpgm")
    a("s_setprio 3")
    a("""
    s_mul_i32 s6, s4, 3
    s_add_u32 s6, s6, s5
    s_sub_u32 s6, s6, 5
    s_mov_b32 s7, 0
    s_cmp_lt_u32 s5, 5
    s_cbranch_scc1 L_SV_TYPED
    s_mov_b32 s7, 1
    s_cmp_lt_u32 s6, 70
    s_cbranch_scc1 L_SV_TYPED
    s_mov_b32 s7, 2
    s_cmp_lt_u32 s6, 90
    s_cbranch_scc1 L_SV_TYPED
    s_mov_b32 s7, 3
    L_SV_TYPED:
    s_cmp_ge_u32 s3, 2
    s_cbranch_scc1 L_SV23_EARLY
    """)
    a(f"""
    s_mov_b32 s36, s8
    s_and_b32 s37, s9, 0xffff
    s_mov_b32 s38, 2560
    s_mov_b32 s39, 0x20000
    v_lshrrev_b32 v3, 5, v0
    v_mul_u32_u24 v3, 1280, v3
    v_and_b32 v4, 31, v0
    v_mul_u32_u24 v4, 40, v4
    v_add_u32 v3, v3, v4
    v_bfe_u32 v4, v0, 3, 1
    v_mul_u32_u24 v5, 1280, v4
    v_mul_u32_u24 v6, 40, v2
    v_add_u32 v5, v5, v6
    s_mul_i32 s44, s5, 160
    """)
    for i in range(5):
        a(f"buffer_load_dwordx2 v[{20+2*i}:{21+2*i}], v3, s[36:39], 0 offen offset:{8*i}")
    for i in range(5):
        a(f"buffer_load_dwordx2 v[{30+2*i}:{31+2*i}], v5, s[36:39], s44 offen offset:{8*i}")
    a(f"""
    s_cmp_eq_u32 s3, 0
    s_cbranch_scc0 L_SV1_PAR
    s_mov_b32 s40, s14
    s_and_b32 s41, s15, 0xffff
    s_mov_b32 s42, {640*8192}
    s_mov_b32 s45, 8192
    s_lshl_b32 s46, s4, 8
    s_lshl_b32 s47, s2, 10
    s_add_u32 s47, s47, {WS_P1Q}
    s_mul_i32 s48, s2, {OPSTR}
    s_add_u32 s48, s48, {WS_OP}
    s_mov_b32 s49, 40
    s_mov_b32 s50, 0
    s_mov_b32 s51, 16
    s_branch L_SV01_GO
    L_SV1_PAR:
    s_cmp_lt_u32 s4, 14
    s_cselect_b32 s40, s20, s22
    s_cselect_b32 s41, s21, s23
    s_cselect_b32 s46, s4, 0
    s_cbranch_scc1 L_SV1_P2
    s_sub_u32 s46, s4, 14
    L_SV1_P2:
    s_and_b32 s41, s41, 0xffff
    s_mov_b32 s42, {640*3456}
    s_cmp_lt_u32 s4, 28
    s_cselect_b32 s42, s42, 0
    s_cselect_b32 s46, s46, 0
    s_mov_b32 s51, 16
    s_cmp_eq_u32 s46, 13
    s_cselect_b32 s51, 8, s51
    s_lshl_b32 s46, s46, 8
    s_mov_b32 s45, 3456
    s_lshl_b32 s47, s2, 10
    s_add_u32 s47, s47, {WS_P1G}
    s_mul_i32 s48, s4, 5
    s_add_u32 s48, s48, s5
    s_add_u32 s49, s6, 160
    s_cmp_eq_u32 s7, 0
    s_cselect_b32 s48, s48, s49
    s_cmp_lt_u32 s7, 2
    s_cselect_b32 s48, s48, 250
    s_lshl_b32 s48, s48, 10
    s_add_u32 s48, s48, {WS_Y}
    s_mov_b32 s49, 64
    s_mov_b32 s50, 32
    L_SV01_GO:
    s_mov_b32 s43, 0x20000
    """)
    if opt.exp in (20, 22): a("s_mov_b32 s42, 0")
    a(f"""
    s_mul_i32 s52, s45, 20
    v_mul_lo_u32 v6, v2, s52
    v_lshl_add_u32 v6, v1, 4, v6
    v_mov_b32 v7, 0x7ffffff0
    v_cmp_gt_u32 vcc, s51, v1
    v_cndmask_b32 v6, v7, v6, vcc
    s_mul_i32 s52, s5, 80
    s_mul_i32 s52, s52, s45
    s_add_u32 s52, s52, s46
    """)
    def breg(t):
        if t < 17: return f"a[{4*t}:{4*t+3}]"
        return f"v[{88+4*(t-17)}:{88+4*(t-17)+3}]"
    for t in range(20):
        a(f"buffer_load_dwordx4 {breg(t)}, v6, s[40:43], s52 offen {opt.wflag}")
        if t < 19: a("s_add_u32 s52, s52, s45")
    a(f"""
    v_mov_b32 v60, -1
    v_mov_b32 v61, -1
    v_mov_b32 v62, -1
    v_mov_b32 v63, -1
    v_lshlrev_b32 v7, 4, v0
    v_cmp_gt_u32 vcc, s49, v0
    s_and_saveexec_b64 s[54:55], vcc
    buffer_store_dwordx4 v[60:63], v7, s[32:35], s48 offen sc1
    s_mov_b64 exec, s[54:55]
    buffer_store_dwordx4 v[60:63], v7, s[32:35], s47 offen sc1
    """)
    a("""
    s_cmp_eq_u32 s3, 0
    s_cbranch_scc0 L_SV_NOB0
    s_barrier
    L_SV_NOB0:
    """)
    stamp(1)
    a("s_waitcnt vmcnt(27)")
    for i in range(10):
        a(f"v_lshlrev_b32 v{60+2*i}, 16, v{20+i}")
        a(f"v_and_b32 v{61+2*i}, 0xffff0000, v{20+i}")
    a("v_add_f32 v80, v60, v61")
    a("v_add_f32 v81, v62, v63")
    for i in range(4, 20, 2):
        a(f"v_add_f32 v80, v80, v{60+i}")
        a(f"v_add_f32 v81, v81, v{61+i}")
    a("v_add_f32 v80, v80, v81")
    def allreduce32(reg, tmp, op="v_add_f32"):
        for r in (8, 4, 2, 1):
            a(f"{op}_dpp {reg}, {reg}, {reg} row_ror:{r} row_mask:0xf bank_mask:0xf")
        a(f"v_mov_b32 {tmp}, {reg}")
        a(f"v_permlane16_swap_b32 {tmp}, {reg}")
        a(f"{op} {reg}, {reg}, {tmp}")
    allreduce32("v80", "v81")
    a(f"s_mov_b32 s53, 0x{f2u(1.0/640):08x}")
    a("v_mul_f32 v80, s53, v80")
    for i in range(20):
        a(f"v_sub_f32 v{60+i}, v{60+i}, v80")
    a("v_mul_f32 v82, v60, v60")
    a("v_mul_f32 v83, v61, v61")
    for i in range(2, 20, 2):
        a(f"v_fmac_f32 v82, v{60+i}, v{60+i}")
        a(f"v_fmac_f32 v83, v{61+i}, v{61+i}")
    a("v_add_f32 v82, v82, v83")
    allreduce32("v82", "v83")
    a("v_mul_f32 v82, s53, v82")
    a(f"""
    v_cvt_pk_bf16_f32 v80, v80, v82
    v_and_b32 v82, 0xffff0000, v80
    v_lshlrev_b32 v80, 16, v80
    v_add_f32 v82, 0x{f2u(1e-5):08x}, v82
    v_cvt_pk_bf16_f32 v82, v82, v82
    v_and_b32 v82, 0xffff0000, v82
    v_sqrt_f32 v82, v82
    v_cvt_pk_bf16_f32 v82, v82, v82
    v_and_b32 v82, 0xffff0000, v82
    v_rcp_f32 v83, v82
    """)
    a("""
    v_readlane_b32 s56, v80, 0
    v_readlane_b32 s57, v80, 32
    v_readlane_b32 s58, v83, 0
    v_readlane_b32 s59, v83, 32
    v_readlane_b32 s60, v82, 0
    v_readlane_b32 s61, v82, 32
    v_cmp_eq_u32 vcc, 0, v4
    v_mov_b32 v80, s57
    v_mov_b32 v81, s56
    v_cndmask_b32 v80, v80, v81, vcc
    v_mov_b32 v83, s59
    v_mov_b32 v81, s58
    v_cndmask_b32 v83, v83, v81, vcc
    v_mov_b32 v82, s61
    v_mov_b32 v81, s60
    v_cndmask_b32 v82, v82, v81, vcc
    s_waitcnt vmcnt(22)
    """)
    for i in range(10):
        a(f"v_lshlrev_b32 v{40+2*i}, 16, v{30+i}")
        a(f"v_and_b32 v{41+2*i}, 0xffff0000, v{30+i}")
    for i in range(20):
        a(f"v_sub_f32 v{40+i}, v{40+i}, v80")
    for i in range(10):
        a(f"v_cvt_pk_bf16_f32 v{30+i}, v{40+2*i}, v{41+2*i}")
    for i in range(10):
        a(f"v_lshlrev_b32 v{40+2*i}, 16, v{30+i}")
        a(f"v_and_b32 v{41+2*i}, 0xffff0000, v{30+i}")
    for i in range(20):
        a(f"v_mul_f32 v{60+i}, v{40+i}, v83")
    for i in range(20):
        a(f"v_fma_f32 v{40+i}, -v{60+i}, v82, v{40+i}")
    for i in range(20):
        a(f"v_fma_f32 v{40+i}, v{40+i}, v83, v{60+i}")
    for i in range(20):
        a(f"v_cvt_pk_bf16_f32 v{40+i}, v{40+i}, v{40+i}")
    stamp(2)
    for t in range(20):
        ar = 12 + 4*(t % 2)
        for r in range(4):
            a(f"v_and_b32 v{ar+r}, v{40+t}, v{8+r}")
        a(f"s_waitcnt vmcnt({21-t})")
        c = "0" if t == 0 else "v[84:87]"
        a(f"v_mfma_f32_16x16x32_bf16 v[84:87], v[{ar}:{ar+3}], {breg(t)}, {c}")
    stamp(14)
    a(f"""
    v_lshlrev_b32 v6, 4, v0
    v_mov_b32 v7, 0
    """)
    if opt.fine:
        stamp(11)
        a("s_nop 7"); a("s_nop 7")
        stamp(12)
    if opt.exp != 6:
        a("global_load_dword v60, v7, s[28:29] sc1")
    else:
        a("v_mov_b32 v60, 1")
    if opt.fine: stamp(10)
    if opt.exp == 7:
        a("s_waitcnt vmcnt(0)")
        stamp(15)
    a("buffer_store_dwordx4 v[84:87], v6, s[32:35], s47 offen sc1")
    if opt.exp != 7: stamp(15)
    a("s_waitcnt vmcnt(0)")
    stamp(3)
    a(f"""
    s_mov_b32 s53, 0
    L_SV_INITW:
    v_readfirstlane_b32 s54, v60
    s_cmp_lg_u32 s54, 0
    s_cbranch_scc1 L_SV_INITOK
    s_add_u32 s53, s53, 1
    s_cmp_gt_u32 s53, 20000
    s_cbranch_scc1 L_SV_INITOK
    s_sleep 2
    global_load_dword v60, v7, s[28:29] sc1
    s_waitcnt vmcnt(0)
    s_branch L_SV_INITW
    L_SV_INITOK:
    s_lshl_b32 s54, s4, 7
    s_lshl_b32 s55, s5, 2
    s_add_u32 s54, s54, s55
    s_add_u32 s54, s54, s50
    s_add_u32 s54, s54, {WS_F}
    v_mov_b32 v60, 1
    s_mov_b64 exec, 1
    buffer_store_dword v60, v7, s[32:35], s54 offen sc1
    s_mov_b64 exec, -1
    s_cmp_eq_u32 s3, 0
    s_cbranch_scc0 L_SV1_MID
    """)
    stamp(4)
    if opt.exp in (2,6,7,13,14):
        if TS: emit_ts_store(a, 13)
        a("s_endpgm")
    a(f"""
    v_and_b32 v60, 7, v0
    v_lshlrev_b32 v60, 2, v60
    s_lshl_b32 s54, s4, 7
    s_add_u32 s54, s54, {WS_F}
    s_mov_b32 s53, 0
    L_SV0_FP:
    buffer_load_dword v61, v60, s[32:35], s54 offen sc1
    s_add_u32 s53, s53, 1
    s_waitcnt vmcnt(0)
    v_cmp_ne_u32 vcc, 1, v61
    s_cmp_gt_u32 s53, 20000
    s_cbranch_scc1 L_SV0_FOK
    s_cbranch_vccz L_SV0_FOK
    s_sleep 2
    s_branch L_SV0_FP
    L_SV0_FOK:
    """)
    stamp(5)
    a(f"""
    v_lshrrev_b32 v60, 5, v0
    v_lshlrev_b32 v60, 12, v60
    v_and_b32 v61, 31, v0
    v_lshl_add_u32 v60, v61, 4, v60
    v_and_b32 v61, 1, v2
    s_lshl_b32 s54, s4, 13
    s_lshr_b32 s55, s5, 2
    s_lshl_b32 s55, s55, 9
    s_add_u32 s54, s54, s55
    s_add_u32 s54, s54, {WS_P1Q}
    """)
    for i in range(4):
        a(f"buffer_load_dwordx4 v[{64+4*i}:{67+4*i}], v60, s[32:35], s54 offen offset:{1024*i} sc1")
    a("s_waitcnt vmcnt(0)")
    for r in range(4):
        a(f"v_add_f32 v{64+r}, v{64+r}, v{68+r}")
        a(f"v_add_f32 v{72+r}, v{72+r}, v{76+r}")
    for r in range(4):
        a(f"v_add_f32 v{64+r}, v{64+r}, v{72+r}")
    for r in range(4):
        a(f"v_mov_b32 v{68+r}, v{64+r}")
    for r in range(4):
        a(f"v_permlane32_swap_b32 v{68+r}, v{64+r}")
    for r in range(4):
        a(f"v_add_f32 v{64+r}, v{64+r}, v{68+r}")
    a(f"""
    v_cvt_pk_bf16_f32 v64, v64, v65
    v_cvt_pk_bf16_f32 v65, v66, v67
    v_lshlrev_b32 v60, 4, v1
    v_lshl_add_u32 v60, v61, 3, v60
    ds_write_b64 v60, v[64:65]
    v_mov_b32 v62, {L_QFLAG}
    v_mov_b32 v63, 1
    s_waitcnt lgkmcnt(0)
    ds_write_b32 v62, v63
    """)
    stamp(6)
    a("s_branch L_SV_TAILLOAD")
    a.label("L_SV1_MID")
    if opt.exp in (2,6,7,13,14):
        if TS: emit_ts_store(a, 13)
        a("s_endpgm")
    a(f"""
    s_cmp_eq_u32 s7, 1
    s_cbranch_scc0 L_SV_TAILLOAD
    ; r = u/5
    s_mul_i32 s56, s6, 52429
    s_lshr_b32 s56, s56, 18
    v_and_b32 v60, 7, v0
    v_lshlrev_b32 v60, 2, v60
    v_bfe_u32 v61, v0, 3, 1
    v_mul_u32_u24 v61, {14*128}, v61
    v_add_u32 v60, v60, v61
    s_lshl_b32 s54, s56, 7
    s_add_u32 s54, s54, {WS_F+32}
    s_mov_b32 s53, 0
    L_SV1_FP:
    buffer_load_dword v61, v60, s[32:35], s54 offen sc1
    s_add_u32 s53, s53, 1
    s_waitcnt vmcnt(0)
    v_cmp_ne_u32 vcc, 1, v61
    s_cmp_gt_u32 s53, 20000
    s_cbranch_scc1 L_SV1_FOK
    s_cbranch_vccz L_SV1_FOK
    s_sleep 2
    s_branch L_SV1_FP
    L_SV1_FOK:
    v_lshlrev_b32 v60, 4, v0
    s_lshl_b32 s54, s56, 13
    s_add_u32 s54, s54, {WS_P1G}
    s_add_u32 s55, s54, {14*8192}
    """)
    a(f"""
    v_lshlrev_b32 v6, 4, v0
    s_add_u32 s57, s54, 4096
    s_add_u32 s58, s55, 4096
    """)
    for ks in range(8):
        so = "s54" if ks < 4 else "s57"
        a(f"buffer_load_dwordx4 v[{20+4*ks}:{23+4*ks}], v6, s[32:35], {so} offen offset:{1024*(ks%4)} sc1")
    for ks in range(8):
        so = "s55" if ks < 4 else "s58"
        a(f"buffer_load_dwordx4 v[{52+4*ks}:{55+4*ks}], v6, s[32:35], {so} offen offset:{1024*(ks%4)} sc1")
    a("s_waitcnt vmcnt(8)")
    for ks in range(1, 8):
        for r in range(4):
            a(f"v_add_f32 v{20+r}, v{20+r}, v{20+4*ks+r}")
    a("s_waitcnt vmcnt(0)")
    for ks in range(1, 8):
        for r in range(4):
            a(f"v_add_f32 v{52+r}, v{52+r}, v{52+4*ks+r}")
    K0 = 0.7978845608028654; K1 = 0.044715
    a(f"""
    v_cvt_pk_bf16_f32 v24, v20, v21
    v_cvt_pk_bf16_f32 v25, v22, v23
    v_cvt_pk_bf16_f32 v26, v52, v53
    v_cvt_pk_bf16_f32 v27, v54, v55
    v_lshlrev_b32 v20, 16, v24
    v_and_b32 v21, 0xffff0000, v24
    v_lshlrev_b32 v22, 16, v25
    v_and_b32 v23, 0xffff0000, v25
    v_lshlrev_b32 v52, 16, v26
    v_and_b32 v53, 0xffff0000, v26
    v_lshlrev_b32 v54, 16, v27
    v_and_b32 v55, 0xffff0000, v27
    s_mov_b32 s57, 0x{f2u(K1):08x}
    s_mov_b32 s58, 0x{f2u(-2.0*K0*1.4426950408889634):08x}
    """)
    for r in range(4):
        a(f"v_mul_f32 v{28+r}, v{20+r}, v{20+r}")
    for r in range(4):
        a(f"v_fma_f32 v{28+r}, v{28+r}, s57, 1.0")
    for r in range(4):
        a(f"v_mul_f32 v{28+r}, v{28+r}, v{20+r}")
    for r in range(4):
        a(f"v_mul_f32 v{28+r}, s58, v{28+r}")
    for r in range(4):
        a(f"v_exp_f32 v{28+r}, v{28+r}")
    for r in range(4):
        a(f"v_add_f32 v{28+r}, 1.0, v{28+r}")
    for r in range(4):
        a(f"v_rcp_f32 v{28+r}, v{28+r}")
    for r in range(4):
        a(f"v_mul_f32 v{28+r}, v{28+r}, v{20+r}")
    for r in range(4):
        a(f"v_cvt_pk_bf16_f32 v{28+r}, v{28+r}, v{28+r}")
    for r in range(4):
        a(f"v_and_b32 v{28+r}, 0xffff0000, v{28+r}")
    for r in range(4):
        a(f"v_mul_f32 v{28+r}, v{28+r}, v{52+r}")
    for r in range(4):
        a(f"v_cvt_pk_bf16_f32 v{28+r}, v{28+r}, v{28+r}")
    a(f"""
    v_lshrrev_b32 v6, 5, v0
    v_lshlrev_b32 v6, 9, v6
    v_lshl_add_u32 v6, v1, 5, v6
    v_and_b32 v7, 1, v2
    v_lshl_add_u32 v6, v7, 4, v6
    v_add_u32 v6, {L_AT}, v6
    ds_write_b128 v6, v[28:31]
    s_branch L_SV_TAILLOAD
    """)
    a.label("L_SV23_EARLY")
    if opt.p23 >= 0: a(f"s_setprio {opt.p23}")
    if opt.touch & 1:
        a("v_mov_b32 v7, 0")
        a("global_load_dword v90, v7, s[28:29] sc1")
    if opt.touch & 2:
        a("v_mov_b32 v7, 0")
        a("s_mov_b32 s44, 0x200000")
        a("s_mov_b32 s52, s30")
        a("s_and_b32 s53, s31, 0xffff")
        a("s_mov_b32 s54, 0x1000000")
        a("s_mov_b32 s55, 0x20000")
        a("buffer_load_dword v91, v7, s[52:55], s44 offen")
    a(f"""
    s_cmp_eq_u32 s2, 0
    s_cbranch_scc0 L_SV23_NOINIT
    s_cmp_eq_u32 s3, 2
    s_cbranch_scc0 L_SV23_NOINIT
    v_mov_b32 v60, 0
    v_mov_b32 v61, 0
    v_mov_b32 v62, 0
    v_mov_b32 v63, 0
    v_lshlrev_b32 v7, 4, v0
    s_mov_b32 s44, {WS_F}
    buffer_store_dwordx4 v[60:63], v7, s[32:35], s44 offen sc1
    buffer_store_dwordx4 v[60:63], v7, s[32:35], s44 offen offset:1024 sc1
    buffer_store_dwordx4 v[60:63], v7, s[32:35], s44 offen offset:2048 sc1
    buffer_store_dwordx4 v[60:63], v7, s[32:35], s44 offen offset:3072 sc1
    s_waitcnt vmcnt(0)
    v_mov_b32 v60, 1
    v_mov_b32 v7, 0
    s_mov_b64 exec, 1
    global_store_dword v7, v60, s[28:29] sc1
    s_mov_b64 exec, -1
    s_branch L_SV_TAILLOAD
    L_SV23_NOINIT:
    """)
    a.label("L_SV_TAILLOAD")
    if opt.exp == 13:
        a("s_barrier")
        if TS: emit_ts_store(a, 13)
        a("s_endpgm")
    if opt.exp == 14:
        for _ in range(4): a("s_sleep 100")
        if TS: emit_ts_store(a, 13)
        a("s_endpgm")
    if opt.exp == 8:
        a("s_cmp_ge_u32 s3, 2")
        a("s_cbranch_scc1 L_END")
    if opt.exp == 9:
        a("s_cmp_ge_u32 s3, 2")
        a("s_cbranch_scc1 L_SV_BAR2")
    if opt.exp in (2,6,7):
        if TS: emit_ts_store(a, 13)
        a("s_endpgm")
    stamp(7)
    a(f"""
    s_cmp_ge_u32 s7, 2
    s_cbranch_scc1 L_SV_BAR2
    s_mul_i32 s56, s6, 52429
    s_lshr_b32 s56, s56, 18
    s_mul_i32 s57, s56, 5
    s_sub_u32 s57, s6, s57
    s_cmp_eq_u32 s7, 0
    s_cselect_b32 s40, s16, s24
    s_cselect_b32 s41, s17, s25
    s_mov_b32 s42, {4096*1280}
    s_cselect_b32 s42, s42, {1728*1280}
    s_cselect_b32 s56, s4, s56
    s_cselect_b32 s57, s5, s57
    s_and_b32 s41, s41, 0xffff
    s_mov_b32 s43, 0x20000
    s_lshl_b32 s58, s56, 7
    s_lshl_b32 s59, s3, 5
    s_add_u32 s58, s58, s59
    s_mul_i32 s58, s58, 1280
    s_lshl_b32 s59, s57, 8
    s_add_u32 s58, s58, s59
    s_add_u32 s59, s58, 5120
    v_mul_u32_u24 v6, {8*1280}, v2
    v_lshl_add_u32 v6, v1, 4, v6
    s_cmp_eq_u32 s7, 1
    s_cselect_b32 s60, s56, 0
    s_cmp_eq_u32 s60, 13
    s_cselect_b32 s60, s3, 0
    s_cmp_ge_u32 s60, 2
    s_cbranch_scc0 L_SV_TL2
    v_mov_b32 v6, 0x7ffffff0
    L_SV_TL2:
    v_mov_b32 v62, {L_ISS}
    {"s_mov_b32 s42, 0" if opt.exp in (21, 22) else ""}
    L_SV_ISSW:
    ds_read_b32 v63, v62
    s_waitcnt lgkmcnt(0)
    v_readfirstlane_b32 s60, v63
    s_cmp_ge_u32 s60, 8
    s_cbranch_scc1 L_SV_ISSOK
    s_sleep {opt.sleep}
    s_branch L_SV_ISSW
    L_SV_ISSOK:
    """)
    for t in range(8):
        so = "s58" if t < 4 else "s59"
        a(f"buffer_load_dwordx4 a[{4*t}:{4*t+3}], v6, s[40:43], {so} offen offset:{1280*(t%4)} {opt.wflag}")
    a.label("L_SV_BAR2")
    stamp(8)
    a("""
    s_waitcnt lgkmcnt(0)
    s_barrier
    """)
    stamp(9)
    a(f"""
    s_cmp_eq_u32 s3, 0
    s_cbranch_scc0 L_SV_POSTPUB
    v_mov_b32 v60, {L_ML}
    ds_read_b128 v[20:23], v60
    ds_read_b128 v[24:27], v60 offset:16
    ds_read_b128 v[28:31], v60 offset:32
    ds_read_b128 v[32:35], v60 offset:48
    v_lshlrev_b32 v61, 3, v0
    """)
    for w in range(8):
        a(f"ds_read_b64 v[{40+2*w}:{41+2*w}], v61 offset:{L_OW+512*w}")
    a("s_waitcnt lgkmcnt(8)")
    a("""
    v_max3_f32 v36, v20, v22, v24
    v_max3_f32 v37, v26, v28, v30
    v_max3_f32 v36, v36, v32, v34
    v_max_f32 v36, v36, v37
    """)
    for w in range(8):
        a(f"v_sub_f32 v{20+2*w}, v{20+2*w}, v36")
    for w in range(8):
        a(f"v_exp_f32 v{20+2*w}, v{20+2*w}")
    a("v_mul_f32 v37, v20, v21")
    for w in range(1, 8):
        a(f"v_fmac_f32 v37, v{20+2*w}, v{21+2*w}")
    a("s_waitcnt lgkmcnt(0)")
    a("v_mul_f32 v38, v20, v40")
    a("v_mul_f32 v39, v20, v41")
    for w in range(1, 8):
        a(f"v_fmac_f32 v38, v{20+2*w}, v{40+2*w}")
        a(f"v_fmac_f32 v39, v{20+2*w}, v{41+2*w}")
    a(f"""
    v_min_u32 v36, -2, v36
    v_min_u32 v37, -2, v37
    v_min_u32 v38, -2, v38
    v_min_u32 v39, -2, v39
    s_mul_i32 s48, s2, {OPSTR}
    s_add_u32 s48, s48, {WS_OP}
    buffer_store_dwordx2 v[38:39], v61, s[32:35], s48 offen sc1
    v_mov_b32 v60, 512
    s_mov_b64 exec, 1
    buffer_store_dwordx2 v[36:37], v60, s[32:35], s48 offen sc1
    s_mov_b64 exec, -1
    L_SV_POSTPUB:
    """)
    stamp(10)
    a("""
    s_cmp_eq_u32 s7, 0
    s_cbranch_scc1 L_SV_OGATH
    s_cmp_eq_u32 s7, 1
    s_cbranch_scc1 L_SV_GEMV2
    s_cmp_eq_u32 s7, 2
    s_cbranch_scc0 L_SV_EXIT
    s_cmp_ge_u32 s3, 2
    s_cbranch_scc1 L_FINAL
    s_branch L_SV_EXIT
    """)
    a.label("L_SV_OGATH")
    a(f"""
    v_bfe_u32 v60, v0, 3, 1
    v_mul_u32_u24 v61, {4*OPSTR}, v60
    v_and_b32 v62, 7, v0
    v_lshl_add_u32 v62, v2, 3, v62
    v_lshl_add_u32 v63, v62, 2, v61
    v_and_b32 v64, 3, v0
    v_mul_u32_u24 v64, {OPSTR}, v64
    v_add_u32 v64, v64, v61
    s_mul_i32 s48, s4, {8*OPSTR}
    s_add_u32 s48, s48, {WS_OP}
    s_add_u32 s49, s48, 512
    s_lshl_b32 s50, s3, 7
    s_add_u32 s48, s48, s50
    v_lshlrev_b32 v65, 9, v60
    v_lshl_add_u32 v65, v62, 2, v65
    s_add_u32 s50, s50, {L_AT}
    v_add_u32 v65, s50, v65
    s_mov_b32 s53, 0
    L_SV_OP:
    buffer_load_dwordx2 v[20:21], v64, s[32:35], s49 offen sc1
    buffer_load_dword v22, v63, s[32:35], s48 offen sc1
    buffer_load_dword v23, v63, s[32:35], s48 offen offset:{OPSTR} sc1
    buffer_load_dword v24, v63, s[32:35], s48 offen offset:{2*OPSTR} sc1
    buffer_load_dword v25, v63, s[32:35], s48 offen offset:{3*OPSTR} sc1
    s_add_u32 s53, s53, 1
    s_waitcnt vmcnt(0)
    v_max3_u32 v26, v20, v21, v22
    v_max3_u32 v27, v23, v24, v25
    v_max_u32 v26, v26, v27
    v_cmp_eq_u32 vcc, -1, v26
    s_cmp_gt_u32 s53, 20000
    s_cbranch_scc1 L_SV_OOK
    s_cbranch_vccnz L_SV_OP
    L_SV_OOK:
    """)
    stamp(11)
    a(f"""
    v_max_f32_dpp v26, v20, v20 quad_perm:[1,0,3,2] row_mask:0xf bank_mask:0xf
    v_max_f32_dpp v26, v26, v26 quad_perm:[2,3,0,1] row_mask:0xf bank_mask:0xf
    v_sub_f32 v20, v20, v26
    v_exp_f32 v20, v20
    v_mul_f32 v21, v20, v21
    v_add_f32_dpp v27, v21, v21 quad_perm:[1,0,3,2] row_mask:0xf bank_mask:0xf
    v_add_f32_dpp v27, v27, v27 quad_perm:[2,3,0,1] row_mask:0xf bank_mask:0xf
    v_rcp_f32 v27, v27
    v_mul_f32 v20, v20, v27
    v_mul_f32_dpp v28, v20, v22 quad_perm:[0,0,0,0] row_mask:0xf bank_mask:0xf
    v_fmac_f32_dpp v28, v20, v23 quad_perm:[1,1,1,1] row_mask:0xf bank_mask:0xf
    v_fmac_f32_dpp v28, v20, v24 quad_perm:[2,2,2,2] row_mask:0xf bank_mask:0xf
    v_fmac_f32_dpp v28, v20, v25 quad_perm:[3,3,3,3] row_mask:0xf bank_mask:0xf
    v_cvt_pk_bf16_f32 v28, v28, v28
    ds_write_b32 v65, v28
    """)
    a.label("L_SV_GEMV2")
    a(f"""
    v_bfe_u32 v60, v0, 3, 1
    v_lshlrev_b32 v60, 9, v60
    v_lshl_add_u32 v60, v2, 5, v60
    s_lshl_b32 s50, s3, 7
    s_add_u32 s50, s50, {L_AT}
    v_add_u32 v60, s50, v60
    ds_read_b128 v[40:43], v60
    ds_read_b128 v[44:47], v60 offset:16
    s_waitcnt lgkmcnt(0)
    """)
    for t in range(8):
        ar = 12 + 4*(t % 2)
        for r in range(4):
            a(f"v_and_b32 v{ar+r}, v{40+t}, v{8+r}")
        a(f"s_waitcnt vmcnt({7-t})")
        c = "0" if t == 0 else "v[84:87]"
        a(f"v_mfma_f32_16x16x32_bf16 v[84:87], v[{ar}:{ar+3}], a[{4*t}:{4*t+3}], {c}")
    a(f"""
    v_lshlrev_b32 v60, 4, v0
    s_lshl_b32 s50, s3, 10
    s_add_u32 s50, s50, {L_YR}
    v_add_u32 v61, s50, v60
    ds_write_b128 v61, v[84:87]
    s_waitcnt lgkmcnt(0)
    s_barrier
    s_cmp_eq_u32 s3, 0
    s_cbranch_scc0 L_SV_EXIT
    ds_read_b128 v[20:23], v60 offset:{L_YR}
    ds_read_b128 v[24:27], v60 offset:{L_YR+1024}
    ds_read_b128 v[28:31], v60 offset:{L_YR+2048}
    ds_read_b128 v[32:35], v60 offset:{L_YR+3072}
    ; y slot
    s_mul_i32 s48, s4, 5
    s_add_u32 s48, s48, s5
    s_add_u32 s49, s6, 160
    s_cmp_eq_u32 s7, 0
    s_cselect_b32 s48, s48, s49
    s_lshl_b32 s48, s48, 10
    s_add_u32 s48, s48, {WS_Y}
    v_lshlrev_b32 v6, 4, v0
    s_waitcnt lgkmcnt(0)
    """)
    for r in range(4):
        a(f"v_add_f32 v{20+r}, v{20+r}, v{24+r}")
        a(f"v_add_f32 v{28+r}, v{28+r}, v{32+r}")
    for r in range(4):
        a(f"v_add_f32 v{20+r}, v{20+r}, v{28+r}")
    for r in range(4):
        a(f"v_min_u32 v{20+r}, -2, v{20+r}")
    a("buffer_store_dwordx4 v[20:23], v6, s[32:35], s48 offen sc1")
    stamp(12)
    a("s_branch L_SV_EXIT")
    a.label("L_FINAL")
    a(f"""
    s_sub_u32 s44, s6, 70
    s_lshl_b32 s44, s44, 1
    s_add_u32 s44, s44, s3
    s_sub_u32 s44, s44, 2
    s_lshr_b32 s45, s44, 3
    s_bfe_u32 s46, s44, 0x10002
    s_and_b32 s47, s44, 3
    v_lshrrev_b32 v60, 1, v0
    v_lshlrev_b32 v60, 7, v60
    v_and_b32 v61, 1, v0
    v_lshl_add_u32 v60, v61, 4, v60
    s_mov_b32 s54, {WS_F+32}
    s_mov_b32 s53, 0
    L_FN_FP:
    buffer_load_dwordx4 v[20:23], v60, s[32:35], s54 offen sc1
    s_add_u32 s53, s53, 1
    s_waitcnt vmcnt(0)
    v_and_b32 v20, v20, v21
    v_and_b32 v22, v22, v23
    v_and_b32 v20, v20, v22
    v_cmp_ne_u32 vcc, 1, v20
    s_cmp_gt_u32 s53, 20000
    s_cbranch_scc1 L_FN_FOK
    s_cbranch_vccz L_FN_FOK
    s_sleep 2
    s_branch L_FN_FP
    L_FN_FOK:
    s_mov_b32 s36, s8
    s_and_b32 s37, s9, 0xffff
    s_mov_b32 s38, 2560
    s_mov_b32 s39, 0x20000
    s_mov_b32 s40, s26
    s_and_b32 s41, s27, 0xffff
    s_mov_b32 s42, 2560
    s_mov_b32 s43, 0x20000
    s_mul_i32 s48, s46, 1280
    s_lshl_b32 s49, s45, 8
    s_add_u32 s48, s48, s49
    s_and_b32 s49, s47, 1
    s_lshl_b32 s49, s49, 7
    s_add_u32 s48, s48, s49
    s_lshr_b32 s49, s47, 1
    s_lshl_b32 s49, s49, 3
    s_add_u32 s48, s48, s49
    v_and_b32 v61, 7, v0
    v_lshlrev_b32 v62, 4, v61
    buffer_load_dwordx2 v[50:51], v62, s[36:39], s48 offen
    v_lshrrev_b32 v60, 3, v0
    v_mul_u32_u24 v63, 5120, v60
    v_lshl_add_u32 v63, v61, 4, v63
    v_mov_b32 v64, 0x7ffffff0
    v_cmp_gt_u32 vcc, 6, v60
    v_cndmask_b32 v64, v64, v63, vcc
    s_lshl_b32 s49, s45, 10
    s_lshl_b32 s50, s46, 9
    s_add_u32 s49, s49, s50
    s_lshl_b32 s50, s47, 7
    s_add_u32 s49, s49, s50
    s_add_u32 s49, s49, {WS_Y}
    s_add_u32 s50, s49, {160*1024}
    s_add_u32 s51, s50, 40960
    s_add_u32 s55, s49, 40960
    s_add_u32 s56, s49, {2*40960}
    s_add_u32 s57, s49, {3*40960}
    s_mov_b32 s53, 0
    L_FN_P1:
    buffer_load_dwordx4 v[20:23], v63, s[32:35], s50 offen sc1
    buffer_load_dwordx4 v[24:27], v64, s[32:35], s51 offen sc1
    s_add_u32 s53, s53, 1
    s_waitcnt vmcnt(0)
    v_max3_u32 v28, v20, v21, v22
    v_max3_u32 v29, v23, v24, v25
    v_max3_u32 v28, v28, v26, v27
    v_max_u32 v28, v28, v29
    v_cmp_eq_u32 vcc, -1, v28
    s_cmp_gt_u32 s53, 20000
    s_cbranch_scc1 L_FN_OK1
    s_cbranch_vccnz L_FN_P1
    L_FN_OK1:
    """)
    def xlane_reduce(base, tmp):
        for r in range(4):
            a(f"v_add_f32_dpp v{base+r}, v{base+r}, v{base+r} row_ror:8 row_mask:0xf bank_mask:0xf")
        for r in range(4):
            a(f"v_mov_b32 v{tmp+r}, v{base+r}")
        for r in range(4):
            a(f"v_permlane16_swap_b32 v{tmp+r}, v{base+r}")
        for r in range(4):
            a(f"v_add_f32 v{base+r}, v{base+r}, v{tmp+r}")
        for r in range(4):
            a(f"v_mov_b32 v{tmp+r}, v{base+r}")
        for r in range(4):
            a(f"v_permlane32_swap_b32 v{tmp+r}, v{base+r}")
        for r in range(4):
            a(f"v_add_f32 v{base+r}, v{base+r}, v{tmp+r}")
    for r in range(4):
        a(f"v_add_f32 v{20+r}, v{20+r}, v{24+r}")
    xlane_reduce(20, 24)
    a(f"""
    v_cvt_pk_bf16_f32 v24, v20, v21
    v_cvt_pk_bf16_f32 v25, v22, v23
    v_lshlrev_b32 v20, 16, v24
    v_and_b32 v21, 0xffff0000, v24
    v_lshlrev_b32 v22, 16, v25
    v_and_b32 v23, 0xffff0000, v25
    s_mov_b32 s58, 0x{f2u(-1.4426950408889634):08x}
    """)
    for r in range(4):
        a(f"v_mul_f32 v{24+r}, s58, v{20+r}")
    for r in range(4):
        a(f"v_exp_f32 v{24+r}, v{24+r}")
    for r in range(4):
        a(f"v_add_f32 v{24+r}, 1.0, v{24+r}")
    for r in range(4):
        a(f"v_rcp_f32 v{24+r}, v{24+r}")
    for r in range(4):
        a(f"v_mul_f32 v{24+r}, v{24+r}, v{20+r}")
    a(f"""
    v_cvt_pk_bf16_f32 v52, v24, v25
    v_cvt_pk_bf16_f32 v53, v26, v27
    v_lshlrev_b32 v54, 16, v52
    v_and_b32 v55, 0xffff0000, v52
    v_lshlrev_b32 v56, 16, v53
    v_and_b32 v57, 0xffff0000, v53
    v_lshlrev_b32 v40, 16, v50
    v_and_b32 v41, 0xffff0000, v50
    v_lshlrev_b32 v42, 16, v51
    v_and_b32 v43, 0xffff0000, v51
    s_mov_b32 s53, 0
    L_FN_P2:
    buffer_load_dwordx4 v[20:23], v63, s[32:35], s49 offen sc1
    buffer_load_dwordx4 v[24:27], v63, s[32:35], s55 offen sc1
    buffer_load_dwordx4 v[28:31], v63, s[32:35], s56 offen sc1
    buffer_load_dwordx4 v[32:35], v63, s[32:35], s57 offen sc1
    s_add_u32 s53, s53, 1
    s_waitcnt vmcnt(0)
    v_max3_u32 v36, v20, v21, v22
    v_max3_u32 v37, v23, v24, v25
    v_max3_u32 v38, v26, v27, v28
    v_max3_u32 v39, v29, v30, v31
    v_max3_u32 v36, v36, v32, v33
    v_max3_u32 v37, v37, v34, v35
    v_max3_u32 v36, v36, v38, v39
    v_max_u32 v36, v36, v37
    v_cmp_eq_u32 vcc, -1, v36
    s_cmp_gt_u32 s53, 20000
    s_cbranch_scc1 L_FN_OK2
    s_cbranch_vccnz L_FN_P2
    L_FN_OK2:
    """)
    stamp(11)
    for r in range(4):
        a(f"v_add_f32 v{20+r}, v{20+r}, v{24+r}")
        a(f"v_add_f32 v{28+r}, v{28+r}, v{32+r}")
    for r in range(4):
        a(f"v_add_f32 v{20+r}, v{20+r}, v{28+r}")
    xlane_reduce(20, 24)
    a(f"""
    v_cvt_pk_bf16_f32 v24, v20, v21
    v_cvt_pk_bf16_f32 v25, v22, v23
    v_lshlrev_b32 v20, 16, v24
    v_and_b32 v21, 0xffff0000, v24
    v_lshlrev_b32 v22, 16, v25
    v_and_b32 v23, 0xffff0000, v25
    """)
    for r in range(4):
        a(f"v_mul_f32 v{20+r}, v{20+r}, v{54+r}")
    a(f"""
    v_cvt_pk_bf16_f32 v24, v20, v21
    v_cvt_pk_bf16_f32 v25, v22, v23
    v_lshlrev_b32 v20, 16, v24
    v_and_b32 v21, 0xffff0000, v24
    v_lshlrev_b32 v22, 16, v25
    v_and_b32 v23, 0xffff0000, v25
    """)
    for r in range(4):
        a(f"v_add_f32 v{20+r}, v{20+r}, v{40+r}")
    a(f"""
    v_cvt_pk_bf16_f32 v24, v20, v21
    v_cvt_pk_bf16_f32 v25, v22, v23
    s_mov_b64 exec, 0xff
    buffer_store_dwordx2 v[24:25], v62, s[40:43], s48 offen
    s_mov_b64 exec, -1
    """)
    stamp(12)
    a.label("L_SV_EXIT")
    if TS:
        emit_ts_store(a, 13)
    a.label("L_END")
    a("s_endpgm")
    a.raw(".p2align 6")
    a.label("L_CODE_END")
    a.raw("    s_endpgm")
    a.raw(".fill 256, 4, 0xBF810000")
    return a

def emit_ts_store(a, idx):
    a(f"s_memrealtime s[{64+2*idx}:{65+2*idx}]")
    a(f"""
    s_waitcnt lgkmcnt(0) vmcnt(0)
    s_mov_b32 s52, s30
    s_and_b32 s53, s31, 0xffff
    s_mov_b32 s54, 0x1000000
    s_mov_b32 s55, 0x20000
    s_mul_i32 s56, s2, 12
    s_add_u32 s56, s56, s3
    s_lshl_b32 s56, s56, 6
    s_add_u32 s56, s56, {WS_TS}
    s_mov_b64 exec, 1
    v_mov_b32 v99, 0
    """)
    if HWID: a("s_getreg_b32 s80, hwreg(HW_REG_HW_ID)")
    for i in range(16):
        a(f"v_mov_b32 v98, s{64+2*i}")
        a(f"buffer_store_dword v98, v99, s[52:55], s56 offen offset:{4*i}")
    a("s_mov_b64 exec, -1")

HEADER = open('cdna_kernels/%s.s.ref' % NAME).read().split('; Override launch geometry')[0]

def build(opt):
    a = gen(opt)
    body = a.text()
    src = HEADER + f"""; Override launch geometry by editing the next line (default: block=256,
; grid=ceil(out_elems/256), lds=0). Harness parses it; keep it on one line.
; @launch grid=(256,1,1) block=(768,1,1) lds={LDS_SIZE}
.amdgcn_target "amdgcn-amd-amdhsa--gfx950"
.text
.globl {NAME}_kernel
.p2align 8
.type {NAME}_kernel,@function
{NAME}_kernel:
{body}
.section .rodata,"a"
.p2align 6
.amdhsa_kernel {NAME}_kernel
  .amdhsa_next_free_vgpr 168
  .amdhsa_next_free_sgpr 102
  .amdhsa_accum_offset 100
  .amdhsa_group_segment_fixed_size 0
  .amdhsa_kernarg_size 96
  .amdhsa_user_sgpr_count 2
  .amdhsa_user_sgpr_kernarg_segment_ptr 1
  .amdhsa_system_sgpr_workgroup_id_x 1
.end_amdhsa_kernel
"""
    return src, a

if __name__ == "__main__":
    ap = argparse.ArgumentParser()
    ap.add_argument("-o", default=f"cdna_kernels/{NAME}.s")
    ap.add_argument("--ts", action="store_true")
    ap.add_argument("--dump_scores", action="store_true")
    ap.add_argument("--exp", type=int, default=0)
    ap.add_argument("--sleep", type=int, default=4)
    ap.add_argument("--nopf", action="store_true")
    ap.add_argument("--p23", type=int, default=-1)
    ap.add_argument("--touch", type=int, default=0)
    ap.add_argument("--fine", action="store_true")
    ap.add_argument("--depth", type=int, default=4)
    ap.add_argument("--kvflag", default="nt")
    ap.add_argument("--wflag", default="nt")
    ap.add_argument("--xv", type=int, default=8)
    opt = ap.parse_args()
    HWID = opt.fine
    import subprocess, re, os, tempfile
    def code_size(src):
        with tempfile.TemporaryDirectory() as d:
            p = os.path.join(d, "t.s"); o = os.path.join(d, "t.o")
            open(p, "w").write(src)
            r = subprocess.run(["clang", "-x", "assembler", "-target", "amdgcn-amd-amdhsa", "-mcpu=gfx950", "-c", p, "-o", o], capture_output=True, text=True)
            assert r.returncode == 0, r.stderr[:3000]
            out = subprocess.run(["llvm-readelf", "-s", o], capture_output=True, text=True).stdout
            for line in out.splitlines():
                if line.strip().endswith("L_CODE_END"):
                    return int(line.split()[1], 16)
        raise RuntimeError("no L_CODE_END")
    opt.pfn = 16
    src, a = build(opt)
    sz = code_size(src)
    opt.pfn = (sz + 1023) // 1024
    src, a = build(opt)
    sz = code_size(src)
    assert opt.pfn * 1024 <= sz + 1024 + 64
    open(opt.o, "w").write(src)
    print("written", opt.o, "lines", len(a.lines), "nops", a.nops, "code bytes", sz, "pfn", opt.pfn)
```

```python
import sys, argparse
from asmgen import Asm

NAME = "recurrent_scan__sliding_block_cached__geglu_ffn__decode"

WS_F   = 0x00000
WS_P1Q = 0x10000
WS_P1G = 0x50000
WS_OP  = 0x90000
WS_Y   = 0xC0000
WS_SIZE= 0x100000
WS_TS  = 0x200000
OPSTR  = 640
L_QT   = 0x000
L_QFLAG= 0x100
L_ISS  = 0x104
L_AT   = 0x200
L_ML   = 0x600
L_OW   = 0x800
L_YR   = 0x1800
LDS_SIZE = 0x2800

SENT = 0xFFFFFFFF
HWID = False
import itertools
_cnt = itertools.count()
C_SCALE = 0.08838834764831845 * 1.4426950408889634
import struct
def f2u(f): return struct.unpack('<I', struct.pack('<f', f))[0]

def gen(opt):
    a = Asm()
    TS = opt.ts
    def stamp(idx):
        if TS:
            a(f"s_memrealtime s[{64+2*idx}:{65+2*idx}]")
    if TS: a("s_memrealtime s[64:65]")
    a("""
    s_load_dwordx16 s[8:23], s[0:1], 0
    s_load_dwordx8 s[24:31], s[0:1], 64
    s_cmp_ge_u32 s2, 256
    s_cbranch_scc1 L_END
    v_lshrrev_b32 v2, 6, v0
    v_and_b32 v0, 63, v0
    v_readfirstlane_b32 s3, v2
    s_lshr_b32 s4, s2, 3
    s_and_b32 s5, s2, 7
    v_and_b32 v1, 15, v0
    v_lshrrev_b32 v2, 4, v0
    v_and_b32 v3, 7, v0
    v_and_b32 v4, 1, v0
    v_mov_b32 v5, 0xffff
    v_lshlrev_b32 v4, 4, v4
    v_lshlrev_b32 v5, v4, v5
    v_lshrrev_b32 v3, 1, v3
    """)
    for r in range(4):
        a(f"v_cmp_eq_u32 vcc, {r}, v3")
        a(f"v_cndmask_b32 v{8+r}, 0, v5, vcc")
    if not opt.nopf:
        a("""
        s_cmp_eq_u32 s3, 3
        s_cbranch_scc0 L_NOPF
        s_getpc_b64 s[50:51]
        L_PCREF:
        s_sub_u32 s50, s50, L_PCREF-%s_kernel
        s_subb_u32 s51, s51, 0
        v_lshlrev_b32 v6, 4, v0
        """ % NAME)
        for i in range(opt.pfn):
            if i % 4 == 0 and i > 0:
                a("s_add_u32 s50, s50, 4096")
                a("s_addc_u32 s51, s51, 0")
            a(f"global_load_dwordx4 v[92:95], v6, s[50:51] offset:{(i%4)*1024}")
        a.label("L_NOPF")
    a("""
    v_mov_b32 v6, 0
    v_mov_b32 v7, 0
    v_mov_b32 v12, %d
    ds_write_b64 v12, v[6:7]
    s_waitcnt lgkmcnt(0)
    s_mov_b32 s32, s30
    s_and_b32 s33, s31, 0xffff
    s_mov_b32 s34, %d
    s_mov_b32 s35, 0x20000
    s_cmp_eq_u32 s3, 0
    s_cbranch_scc1 L_SERVICE
    s_barrier
    s_cmp_lt_u32 s3, 4
    s_cbranch_scc1 L_SERVICE
    """ % (L_QFLAG, WS_SIZE))
    a("""
    s_sub_u32 s6, s3, 4
    s_mov_b32 s36, s10
    s_and_b32 s37, s11, 0xffff
    s_mov_b32 s38, 0x8000000
    s_mov_b32 s39, 0x20000
    s_mov_b32 s40, s12
    s_and_b32 s41, s13, 0xffff
    s_mov_b32 s42, 0x8000000
    s_mov_b32 s43, 0x20000
    s_lshr_b32 s44, s5, 2
    s_lshl_b32 s44, s44, 5
    s_add_u32 s44, s44, s4
    s_lshl_b32 s44, s44, 21
    s_and_b32 s45, s5, 3
    s_lshl_b32 s45, s45, 17
    s_add_u32 s44, s44, s45
    s_lshl_b32 s45, s6, 12
    s_add_u32 s44, s44, s45
    s_add_u32 s44, s44, 0x180000
    s_add_u32 s45, s44, 0x8000
    s_add_u32 s46, s44, 0x10000
    s_add_u32 s47, s44, 0x18000
    v_lshlrev_b32 v3, 4, v0
    v_lshlrev_b32 v12, 4, v1
    v_mov_b32 v13, %d
    v_mov_b32 v14, 1
    """ % L_QFLAG)
    KB = 36
    D = opt.depth; X = opt.xv
    def kload(jj): a(f"buffer_load_dwordx4 v[{KB+4*jj}:{KB+4*jj+3}], v3, s[36:39], s{44+jj//4} offen offset:{(jj%4)*1024} {opt.kvflag}")
    def vload(jj): a(f"buffer_load_dwordx4 a[{4*jj}:{4*jj+3}], v3, s[40:43], s{44+jj//4} offen offset:{(jj%4)*1024} {opt.kvflag}")
    n = 0
    for jj in range(16):
        if n >= D: a(f"s_waitcnt vmcnt({D-1})")
        kload(jj); n += 1
    for jj in range(X):
        if n >= D: a(f"s_waitcnt vmcnt({D-1})")
        vload(jj); n += 1
    def issued_signal():
        stamp(1)
        a("""
        s_mov_b64 exec, 1
        ds_add_u32 v13, v14 offset:4
        s_mov_b64 exec, -1
        """)
    if X == 16: issued_signal()
    a(f"""
    L_ST_QW:
    ds_read_b32 v15, v13
    s_waitcnt lgkmcnt(0)
    v_readfirstlane_b32 s48, v15
    s_cmp_lg_u32 s48, {0 if opt.exp not in (1,2,3,6,7,8,9,13,14) else 12345}
    s_cbranch_scc1 L_ST_QGO
    s_sleep {opt.sleep}
    s_branch L_ST_QW
    L_ST_QGO:
    ds_read_b128 v[4:7], v12
    s_waitcnt lgkmcnt(0)
    """)
    stamp(2)
    nv = X
    rem = 16 - X
    for jj in range(16):
        k = KB + 4*jj
        need = (15 - jj) + nv
        if need < D: a(f"s_waitcnt vmcnt({need})")
        a(f"v_dot2_f32_bf16 v{k}, v{k}, v4, 0")
        a(f"v_dot2_f32_bf16 v{k}, v{k+1}, v5, v{k}")
        a(f"v_dot2_f32_bf16 v{k}, v{k+2}, v6, v{k}")
        a(f"v_dot2_f32_bf16 v{k}, v{k+3}, v7, v{k}")
        if rem and nv < 16 and ((jj + 1) * rem) // 16 > (nv - X):
            a(f"s_waitcnt vmcnt({D-1})")
            vload(nv); nv += 1
            if nv == 16: issued_signal()
    assert nv == 16
    P = lambda j: f"v{KB+4*j}"
    for j in range(8):
        a(f"v_add_f32_dpp {P(j)}, {P(j)}, {P(j)} row_ror:8 row_mask:0xf bank_mask:0x3")
    for j in range(8):
        a(f"v_add_f32_dpp {P(j)}, {P(j+8)}, {P(j+8)} row_ror:8 row_mask:0xf bank_mask:0xc")
    for j in range(4):
        a(f"v_add_f32_dpp {P(j)}, {P(j)}, {P(j)} row_shl:4 row_mask:0xf bank_mask:0x5")
    for j in range(4):
        a(f"v_add_f32_dpp {P(j)}, {P(j+4)}, {P(j+4)} row_shr:4 row_mask:0xf bank_mask:0xa")
    for j in range(4):
        a(f"v_add_f32_dpp {P(j)}, {P(j)}, {P(j)} quad_perm:[1,0,3,2] row_mask:0xf bank_mask:0xf")
    for j in range(4):
        a(f"v_add_f32_dpp {P(j)}, {P(j)}, {P(j)} quad_perm:[2,3,0,1] row_mask:0xf bank_mask:0xf")
    if opt.dump_scores:
        a(f"""
        s_mov_b32 s52, s30
        s_and_b32 s53, s31, 0xffff
        s_mov_b32 s54, 0x1000000
        s_mov_b32 s55, 0x20000
        s_lshl_b32 s56, s2, 3
        s_add_u32 s56, s56, s6
        s_lshl_b32 s56, s56, 10
        s_add_u32 s56, s56, 0x300000
        v_lshlrev_b32 v15, 2, v0
        """)
        for q in range(4):
            a(f"buffer_store_dword {P(q)}, v15, s[52:55], s56 offen offset:{q*256}")
    a(f"""
    v_max_f32 v16, {P(0)}, {P(1)}
    v_max3_f32 v16, {P(2)}, {P(3)}, v16
    v_max_f32_dpp v16, v16, v16 row_ror:4 row_mask:0xf bank_mask:0xf
    v_max_f32_dpp v16, v16, v16 row_ror:8 row_mask:0xf bank_mask:0xf
    v_mov_b32 v17, v16
    v_permlane16_swap_b32 v17, v16
    v_max_f32 v16, v16, v17
    v_mov_b32 v17, v16
    v_permlane32_swap_b32 v17, v16
    v_max_f32 v16, v16, v17
    s_mov_b32 s48, 0x{f2u(C_SCALE):08x}
    v_mul_f32 v16, s48, v16
    """)
    for q in range(4):
        a(f"v_fma_f32 {P(q)}, {P(q)}, s48, -v16")
    for q in range(4):
        a(f"v_exp_f32 {P(q)}, {P(q)}")
    a(f"""
    v_add_f32 v17, {P(0)}, {P(1)}
    v_add_f32 v18, {P(2)}, {P(3)}
    """)
    for q in range(4):
        a(f"v_cvt_pk_bf16_f32 v{24+q}, {P(q)}, {P(q)}")
    a(f"""
    v_add_f32 v17, v17, v18
    v_add_f32_dpp v17, v17, v17 row_ror:4 row_mask:0xf bank_mask:0xf
    v_add_f32_dpp v17, v17, v17 row_ror:8 row_mask:0xf bank_mask:0xf
    v_mov_b32 v18, v17
    v_permlane16_swap_b32 v18, v17
    v_add_f32 v17, v17, v18
    v_mov_b32 v18, v17
    v_permlane32_swap_b32 v18, v17
    v_add_f32 v17, v17, v18
    """)
    a(f"""
    s_lshl_b32 s49, s6, 3
    s_add_u32 s49, s49, {L_ML}
    v_mov_b32 v18, s49
    s_mov_b64 exec, 1
    ds_write_b64 v18, v[16:17]
    s_mov_b64 exec, -1
    """)
    stamp(3)
    for jj in range(16):
        q = jj % 4; bank = jj // 4
        ar = 28 + 4*(jj % 2)
        for r in range(4):
            a(f"v_and_b32_dpp v{ar+r}, v{24+q}, v{8+r} row_newbcast:{4*bank} row_mask:0xf bank_mask:0xf")
        a(f"s_waitcnt vmcnt({15-jj})")
        c = "0" if jj == 0 else "v[20:23]"
        a(f"v_mfma_f32_16x16x32_bf16 v[20:23], v[{ar}:{ar+3}], a[{4*jj}:{4*jj+3}], {c}")
    stamp(4)
    a(f"""
    v_lshlrev_b32 v12, 5, v1
    v_lshl_add_u32 v12, v2, 4, v12
    s_lshl_b32 s49, s6, 9
    s_add_u32 s49, s49, {L_OW}
    v_add_u32 v12, s49, v12
    s_mov_b32 exec_hi, 0
    ds_write_b128 v12, v[20:23]
    s_mov_b32 exec_hi, -1
    s_waitcnt lgkmcnt(0)
    s_barrier
    """)
    if TS:
        emit_ts_store(a, 5)
    a("s_endpgm")

    a.label("L_SERVICE")
    if opt.exp == 1:
        if TS: emit_ts_store(a, 13)
        a("s_endpgm")
    a("s_setprio 3")
    a("""
    s_mul_i32 s6, s4, 3
    s_add_u32 s6, s6, s5
    s_sub_u32 s6, s6, 5
    s_mov_b32 s7, 0
    s_cmp_lt_u32 s5, 5
    s_cbranch_scc1 L_SV_TYPED
    s_mov_b32 s7, 1
    s_cmp_lt_u32 s6, 70
    s_cbranch_scc1 L_SV_TYPED
    s_mov_b32 s7, 2
    s_cmp_lt_u32 s6, 90
    s_cbranch_scc1 L_SV_TYPED
    s_mov_b32 s7, 3
    L_SV_TYPED:
    s_cmp_ge_u32 s3, 2
    s_cbranch_scc1 L_SV23_EARLY
    """)
    a(f"""
    s_mov_b32 s36, s8
    s_and_b32 s37, s9, 0xffff
    s_mov_b32 s38, 2560
    s_mov_b32 s39, 0x20000
    v_lshrrev_b32 v3, 5, v0
    v_mul_u32_u24 v3, 1280, v3
    v_and_b32 v4, 31, v0
    v_mul_u32_u24 v4, 40, v4
    v_add_u32 v3, v3, v4
    v_bfe_u32 v4, v0, 3, 1
    v_mul_u32_u24 v5, 1280, v4
    v_mul_u32_u24 v6, 40, v2
    v_add_u32 v5, v5, v6
    s_mul_i32 s44, s5, 160
    """)
    for i in range(5):
        a(f"buffer_load_dwordx2 v[{20+2*i}:{21+2*i}], v3, s[36:39], 0 offen offset:{8*i}")
    for i in range(5):
        a(f"buffer_load_dwordx2 v[{30+2*i}:{31+2*i}], v5, s[36:39], s44 offen offset:{8*i}")
    a(f"""
    s_cmp_eq_u32 s3, 0
    s_cbranch_scc0 L_SV1_PAR
    s_mov_b32 s40, s14
    s_and_b32 s41, s15, 0xffff
    s_mov_b32 s42, {640*8192}
    s_mov_b32 s45, 8192
    s_lshl_b32 s46, s4, 8
    s_lshl_b32 s47, s2, 10
    s_add_u32 s47, s47, {WS_P1Q}
    s_mul_i32 s48, s2, {OPSTR}
    s_add_u32 s48, s48, {WS_OP}
    s_mov_b32 s49, 40
    s_mov_b32 s50, 0
    s_mov_b32 s51, 16
    s_branch L_SV01_GO
    L_SV1_PAR:
    s_cmp_lt_u32 s4, 14
    s_cselect_b32 s40, s20, s22
    s_cselect_b32 s41, s21, s23
    s_cselect_b32 s46, s4, 0
    s_cbranch_scc1 L_SV1_P2
    s_sub_u32 s46, s4, 14
    L_SV1_P2:
    s_and_b32 s41, s41, 0xffff
    s_mov_b32 s42, {640*3456}
    s_cmp_lt_u32 s4, 28
    s_cselect_b32 s42, s42, 0
    s_cselect_b32 s46, s46, 0
    s_mov_b32 s51, 16
    s_cmp_eq_u32 s46, 13
    s_cselect_b32 s51, 8, s51
    s_lshl_b32 s46, s46, 8
    s_mov_b32 s45, 3456
    s_lshl_b32 s47, s2, 10
    s_add_u32 s47, s47, {WS_P1G}
    s_mul_i32 s48, s4, 5
    s_add_u32 s48, s48, s5
    s_add_u32 s49, s6, 160
    s_cmp_eq_u32 s7, 0
    s_cselect_b32 s48, s48, s49
    s_cmp_lt_u32 s7, 2
    s_cselect_b32 s48, s48, 250
    s_lshl_b32 s48, s48, 10
    s_add_u32 s48, s48, {WS_Y}
    s_mov_b32 s49, 64
    s_mov_b32 s50, 32
    L_SV01_GO:
    s_mov_b32 s43, 0x20000
    """)
    if opt.exp in (20, 22): a("s_mov_b32 s42, 0")
    a(f"""
    s_mul_i32 s52, s45, 20
    v_mul_lo_u32 v6, v2, s52
    v_lshl_add_u32 v6, v1, 4, v6
    v_mov_b32 v7, 0x7ffffff0
    v_cmp_gt_u32 vcc, s51, v1
    v_cndmask_b32 v6, v7, v6, vcc
    s_mul_i32 s52, s5, 80
    s_mul_i32 s52, s52, s45
    s_add_u32 s52, s52, s46
    """)
    def breg(t):
        if t < 17: return f"a[{4*t}:{4*t+3}]"
        return f"v[{88+4*(t-17)}:{88+4*(t-17)+3}]"
    for t in range(20):
        a(f"buffer_load_dwordx4 {breg(t)}, v6, s[40:43], s52 offen {opt.wflag}")
        if t < 19: a("s_add_u32 s52, s52, s45")
    a(f"""
    v_mov_b32 v60, -1
    v_mov_b32 v61, -1
    v_mov_b32 v62, -1
    v_mov_b32 v63, -1
    v_lshlrev_b32 v7, 4, v0
    v_cmp_gt_u32 vcc, s49, v0
    s_and_saveexec_b64 s[54:55], vcc
    buffer_store_dwordx4 v[60:63], v7, s[32:35], s48 offen sc1
    s_mov_b64 exec, s[54:55]
    buffer_store_dwordx4 v[60:63], v7, s[32:35], s47 offen sc1
    """)
    a("""
    s_cmp_eq_u32 s3, 0
    s_cbranch_scc0 L_SV_NOB0
    s_barrier
    L_SV_NOB0:
    """)
    stamp(1)
    a("s_waitcnt vmcnt(27)")
    for i in range(10):
        a(f"v_lshlrev_b32 v{60+2*i}, 16, v{20+i}")
        a(f"v_and_b32 v{61+2*i}, 0xffff0000, v{20+i}")
    a("v_add_f32 v80, v60, v61")
    a("v_add_f32 v81, v62, v63")
    for i in range(4, 20, 2):
        a(f"v_add_f32 v80, v80, v{60+i}")
        a(f"v_add_f32 v81, v81, v{61+i}")
    a("v_add_f32 v80, v80, v81")
    def allreduce32(reg, tmp, op="v_add_f32"):
        for r in (8, 4, 2, 1):
            a(f"{op}_dpp {reg}, {reg}, {reg} row_ror:{r} row_mask:0xf bank_mask:0xf")
        a(f"v_mov_b32 {tmp}, {reg}")
        a(f"v_permlane16_swap_b32 {tmp}, {reg}")
        a(f"{op} {reg}, {reg}, {tmp}")
    allreduce32("v80", "v81")
    a(f"s_mov_b32 s53, 0x{f2u(1.0/640):08x}")
    a("v_mul_f32 v80, s53, v80")
    for i in range(20):
        a(f"v_sub_f32 v{60+i}, v{60+i}, v80")
    a("v_mul_f32 v82, v60, v60")
    a("v_mul_f32 v83, v61, v61")
    for i in range(2, 20, 2):
        a(f"v_fmac_f32 v82, v{60+i}, v{60+i}")
        a(f"v_fmac_f32 v83, v{61+i}, v{61+i}")
    a("v_add_f32 v82, v82, v83")
    allreduce32("v82", "v83")
    a("v_mul_f32 v82, s53, v82")
    a(f"""
    v_cvt_pk_bf16_f32 v80, v80, v82
    v_and_b32 v82, 0xffff0000, v80
    v_lshlrev_b32 v80, 16, v80
    v_add_f32 v82, 0x{f2u(1e-5):08x}, v82
    v_cvt_pk_bf16_f32 v82, v82, v82
    v_and_b32 v82, 0xffff0000, v82
    v_sqrt_f32 v82, v82
    v_cvt_pk_bf16_f32 v82, v82, v82
    v_and_b32 v82, 0xffff0000, v82
    v_rcp_f32 v83, v82
    """)
    a("""
    v_readlane_b32 s56, v80, 0
    v_readlane_b32 s57, v80, 32
    v_readlane_b32 s58, v83, 0
    v_readlane_b32 s59, v83, 32
    v_readlane_b32 s60, v82, 0
    v_readlane_b32 s61, v82, 32
    v_cmp_eq_u32 vcc, 0, v4
    v_mov_b32 v80, s57
    v_mov_b32 v81, s56
    v_cndmask_b32 v80, v80, v81, vcc
    v_mov_b32 v83, s59
    v_mov_b32 v81, s58
    v_cndmask_b32 v83, v83, v81, vcc
    v_mov_b32 v82, s61
    v_mov_b32 v81, s60
    v_cndmask_b32 v82, v82, v81, vcc
    s_waitcnt vmcnt(22)
    """)
    for i in range(10):
        a(f"v_lshlrev_b32 v{40+2*i}, 16, v{30+i}")
        a(f"v_and_b32 v{41+2*i}, 0xffff0000, v{30+i}")
    for i in range(20):
        a(f"v_sub_f32 v{40+i}, v{40+i}, v80")
    for i in range(10):
        a(f"v_cvt_pk_bf16_f32 v{30+i}, v{40+2*i}, v{41+2*i}")
    for i in range(10):
        a(f"v_lshlrev_b32 v{40+2*i}, 16, v{30+i}")
        a(f"v_and_b32 v{41+2*i}, 0xffff0000, v{30+i}")
    for i in range(20):
        a(f"v_mul_f32 v{60+i}, v{40+i}, v83")
    for i in range(20):
        a(f"v_fma_f32 v{40+i}, -v{60+i}, v82, v{40+i}")
    for i in range(20):
        a(f"v_fma_f32 v{40+i}, v{40+i}, v83, v{60+i}")
    for i in range(20):
        a(f"v_cvt_pk_bf16_f32 v{40+i}, v{40+i}, v{40+i}")
    stamp(2)
    for t in range(20):
        ar = 12 + 4*(t % 2)
        for r in range(4):
            a(f"v_and_b32 v{ar+r}, v{40+t}, v{8+r}")
        a(f"s_waitcnt vmcnt({21-t})")
        c = "0" if t == 0 else "v[84:87]"
        a(f"v_mfma_f32_16x16x32_bf16 v[84:87], v[{ar}:{ar+3}], {breg(t)}, {c}")
    stamp(14)
    a(f"""
    v_lshlrev_b32 v6, 4, v0
    v_mov_b32 v7, 0
    """)
    if opt.fine:
        stamp(11)
        a("s_nop 7"); a("s_nop 7")
        stamp(12)
    if opt.exp != 6:
        a("global_load_dword v60, v7, s[28:29] sc1")
    else:
        a("v_mov_b32 v60, 1")
    if opt.fine: stamp(10)
    if opt.exp == 7:
        a("s_waitcnt vmcnt(0)")
        stamp(15)
    a("buffer_store_dwordx4 v[84:87], v6, s[32:35], s47 offen sc1")
    if opt.exp != 7: stamp(15)
    a("s_waitcnt vmcnt(0)")
    stamp(3)
    a(f"""
    s_mov_b32 s53, 0
    L_SV_INITW:
    v_readfirstlane_b32 s54, v60
    s_cmp_lg_u32 s54, 0
    s_cbranch_scc1 L_SV_INITOK
    s_add_u32 s53, s53, 1
    s_cmp_gt_u32 s53, 20000
    s_cbranch_scc1 L_SV_INITOK
    s_sleep 2
    global_load_dword v60, v7, s[28:29] sc1
    s_waitcnt vmcnt(0)
    s_branch L_SV_INITW
    L_SV_INITOK:
    s_lshl_b32 s54, s4, 7
    s_lshl_b32 s55, s5, 2
    s_add_u32 s54, s54, s55
    s_add_u32 s54, s54, s50
    s_add_u32 s54, s54, {WS_F}
    v_mov_b32 v60, 1
    s_mov_b64 exec, 1
    buffer_store_dword v60, v7, s[32:35], s54 offen sc1
    s_mov_b64 exec, -1
    s_cmp_eq_u32 s3, 0
    s_cbranch_scc0 L_SV1_MID
    """)
    stamp(4)
    if opt.exp in (2,6,7,13,14):
        if TS: emit_ts_store(a, 13)
        a("s_endpgm")
    a(f"""
    v_and_b32 v60, 7, v0
    v_lshlrev_b32 v60, 2, v60
    s_lshl_b32 s54, s4, 7
    s_add_u32 s54, s54, {WS_F}
    s_mov_b32 s53, 0
    L_SV0_FP:
    buffer_load_dword v61, v60, s[32:35], s54 offen sc1
    s_add_u32 s53, s53, 1
    s_waitcnt vmcnt(0)
    v_cmp_ne_u32 vcc, 1, v61
    s_cmp_gt_u32 s53, 20000
    s_cbranch_scc1 L_SV0_FOK
    s_cbranch_vccz L_SV0_FOK
    s_sleep 2
    s_branch L_SV0_FP
    L_SV0_FOK:
    """)
    stamp(5)
    a(f"""
    v_lshrrev_b32 v60, 5, v0
    v_lshlrev_b32 v60, 12, v60
    v_and_b32 v61, 31, v0
    v_lshl_add_u32 v60, v61, 4, v60
    v_and_b32 v61, 1, v2
    s_lshl_b32 s54, s4, 13
    s_lshr_b32 s55, s5, 2
    s_lshl_b32 s55, s55, 9
    s_add_u32 s54, s54, s55
    s_add_u32 s54, s54, {WS_P1Q}
    """)
    for i in range(4):
        a(f"buffer_load_dwordx4 v[{64+4*i}:{67+4*i}], v60, s[32:35], s54 offen offset:{1024*i} sc1")
    a("s_waitcnt vmcnt(0)")
    for r in range(4):
        a(f"v_add_f32 v{64+r}, v{64+r}, v{68+r}")
        a(f"v_add_f32 v{72+r}, v{72+r}, v{76+r}")
    for r in range(4):
        a(f"v_add_f32 v{64+r}, v{64+r}, v{72+r}")
    for r in range(4):
        a(f"v_mov_b32 v{68+r}, v{64+r}")
    for r in range(4):
        a(f"v_permlane32_swap_b32 v{68+r}, v{64+r}")
    for r in range(4):
        a(f"v_add_f32 v{64+r}, v{64+r}, v{68+r}")
    a(f"""
    v_cvt_pk_bf16_f32 v64, v64, v65
    v_cvt_pk_bf16_f32 v65, v66, v67
    v_lshlrev_b32 v60, 4, v1
    v_lshl_add_u32 v60, v61, 3, v60
    ds_write_b64 v60, v[64:65]
    v_mov_b32 v62, {L_QFLAG}
    v_mov_b32 v63, 1
    s_waitcnt lgkmcnt(0)
    ds_write_b32 v62, v63
    """)
    stamp(6)
    a("s_branch L_SV_TAILLOAD")
    a.label("L_SV1_MID")
    if opt.exp in (2,6,7,13,14):
        if TS: emit_ts_store(a, 13)
        a("s_endpgm")
    a(f"""
    s_cmp_eq_u32 s7, 1
    s_cbranch_scc0 L_SV_TAILLOAD
    ; r = u/5
    s_mul_i32 s56, s6, 52429
    s_lshr_b32 s56, s56, 18
    v_and_b32 v60, 7, v0
    v_lshlrev_b32 v60, 2, v60
    v_bfe_u32 v61, v0, 3, 1
    v_mul_u32_u24 v61, {14*128}, v61
    v_add_u32 v60, v60, v61
    s_lshl_b32 s54, s56, 7
    s_add_u32 s54, s54, {WS_F+32}
    s_mov_b32 s53, 0
    L_SV1_FP:
    buffer_load_dword v61, v60, s[32:35], s54 offen sc1
    s_add_u32 s53, s53, 1
    s_waitcnt vmcnt(0)
    v_cmp_ne_u32 vcc, 1, v61
    s_cmp_gt_u32 s53, 20000
    s_cbranch_scc1 L_SV1_FOK
    s_cbranch_vccz L_SV1_FOK
    s_sleep 2
    s_branch L_SV1_FP
    L_SV1_FOK:
    v_lshlrev_b32 v60, 4, v0
    s_lshl_b32 s54, s56, 13
    s_add_u32 s54, s54, {WS_P1G}
    s_add_u32 s55, s54, {14*8192}
    """)
    a(f"""
    v_lshlrev_b32 v6, 4, v0
    s_add_u32 s57, s54, 4096
    s_add_u32 s58, s55, 4096
    """)
    for ks in range(8):
        so = "s54" if ks < 4 else "s57"
        a(f"buffer_load_dwordx4 v[{20+4*ks}:{23+4*ks}], v6, s[32:35], {so} offen offset:{1024*(ks%4)} sc1")
    for ks in range(8):
        so = "s55" if ks < 4 else "s58"
        a(f"buffer_load_dwordx4 v[{52+4*ks}:{55+4*ks}], v6, s[32:35], {so} offen offset:{1024*(ks%4)} sc1")
    a("s_waitcnt vmcnt(8)")
    for ks in range(1, 8):
        for r in range(4):
            a(f"v_add_f32 v{20+r}, v{20+r}, v{20+4*ks+r}")
    a("s_waitcnt vmcnt(0)")
    for ks in range(1, 8):
        for r in range(4):
            a(f"v_add_f32 v{52+r}, v{52+r}, v{52+4*ks+r}")
    K0 = 0.7978845608028654; K1 = 0.044715
    a(f"""
    v_cvt_pk_bf16_f32 v24, v20, v21
    v_cvt_pk_bf16_f32 v25, v22, v23
    v_cvt_pk_bf16_f32 v26, v52, v53
    v_cvt_pk_bf16_f32 v27, v54, v55
    v_lshlrev_b32 v20, 16, v24
    v_and_b32 v21, 0xffff0000, v24
    v_lshlrev_b32 v22, 16, v25
    v_and_b32 v23, 0xffff0000, v25
    v_lshlrev_b32 v52, 16, v26
    v_and_b32 v53, 0xffff0000, v26
    v_lshlrev_b32 v54, 16, v27
    v_and_b32 v55, 0xffff0000, v27
    s_mov_b32 s57, 0x{f2u(K1):08x}
    s_mov_b32 s58, 0x{f2u(-2.0*K0*1.4426950408889634):08x}
    """)
    for r in range(4):
        a(f"v_mul_f32 v{28+r}, v{20+r}, v{20+r}")
    for r in range(4):
        a(f"v_fma_f32 v{28+r}, v{28+r}, s57, 1.0")
    for r in range(4):
        a(f"v_mul_f32 v{28+r}, v{28+r}, v{20+r}")
    for r in range(4):
        a(f"v_mul_f32 v{28+r}, s58, v{28+r}")
    for r in range(4):
        a(f"v_exp_f32 v{28+r}, v{28+r}")
    for r in range(4):
        a(f"v_add_f32 v{28+r}, 1.0, v{28+r}")
    for r in range(4):
        a(f"v_rcp_f32 v{28+r}, v{28+r}")
    for r in range(4):
        a(f"v_mul_f32 v{28+r}, v{28+r}, v{20+r}")
    for r in range(4):
        a(f"v_cvt_pk_bf16_f32 v{28+r}, v{28+r}, v{28+r}")
    for r in range(4):
        a(f"v_and_b32 v{28+r}, 0xffff0000, v{28+r}")
    for r in range(4):
        a(f"v_mul_f32 v{28+r}, v{28+r}, v{52+r}")
    for r in range(4):
        a(f"v_cvt_pk_bf16_f32 v{28+r}, v{28+r}, v{28+r}")
    a(f"""
    v_lshrrev_b32 v6, 5, v0
    v_lshlrev_b32 v6, 9, v6
    v_lshl_add_u32 v6, v1, 5, v6
    v_and_b32 v7, 1, v2
    v_lshl_add_u32 v6, v7, 4, v6
    v_add_u32 v6, {L_AT}, v6
    ds_write_b128 v6, v[28:31]
    s_branch L_SV_TAILLOAD
    """)
    a.label("L_SV23_EARLY")
    if opt.p23 >= 0: a(f"s_setprio {opt.p23}")
    if opt.touch & 1:
        a("v_mov_b32 v7, 0")
        a("global_load_dword v90, v7, s[28:29] sc1")
    if opt.touch & 2:
        a("v_mov_b32 v7, 0")
        a("s_mov_b32 s44, 0x200000")
        a("s_mov_b32 s52, s30")
        a("s_and_b32 s53, s31, 0xffff")
        a("s_mov_b32 s54, 0x1000000")
        a("s_mov_b32 s55, 0x20000")
        a("buffer_load_dword v91, v7, s[52:55], s44 offen")
    a(f"""
    s_cmp_eq_u32 s2, 0
    s_cbranch_scc0 L_SV23_NOINIT
    s_cmp_eq_u32 s3, 2
    s_cbranch_scc0 L_SV23_NOINIT
    v_mov_b32 v60, 0
    v_mov_b32 v61, 0
    v_mov_b32 v62, 0
    v_mov_b32 v63, 0
    v_lshlrev_b32 v7, 4, v0
    s_mov_b32 s44, {WS_F}
    buffer_store_dwordx4 v[60:63], v7, s[32:35], s44 offen sc1
    buffer_store_dwordx4 v[60:63], v7, s[32:35], s44 offen offset:1024 sc1
    buffer_store_dwordx4 v[60:63], v7, s[32:35], s44 offen offset:2048 sc1
    buffer_store_dwordx4 v[60:63], v7, s[32:35], s44 offen offset:3072 sc1
    s_waitcnt vmcnt(0)
    v_mov_b32 v60, 1
    v_mov_b32 v7, 0
    s_mov_b64 exec, 1
    global_store_dword v7, v60, s[28:29] sc1
    s_mov_b64 exec, -1
    s_branch L_SV_TAILLOAD
    L_SV23_NOINIT:
    """)
    a.label("L_SV_TAILLOAD")
    if opt.exp == 13:
        a("s_barrier")
        if TS: emit_ts_store(a, 13)
        a("s_endpgm")
    if opt.exp == 14:
        for _ in range(4): a("s_sleep 100")
        if TS: emit_ts_store(a, 13)
        a("s_endpgm")
    if opt.exp == 8:
        a("s_cmp_ge_u32 s3, 2")
        a("s_cbranch_scc1 L_END")
    if opt.exp == 9:
        a("s_cmp_ge_u32 s3, 2")
        a("s_cbranch_scc1 L_SV_BAR2")
    if opt.exp in (2,6,7):
        if TS: emit_ts_store(a, 13)
        a("s_endpgm")
    stamp(7)
    a(f"""
    s_cmp_ge_u32 s7, 2
    s_cbranch_scc1 L_SV_BAR2
    s_mul_i32 s56, s6, 52429
    s_lshr_b32 s56, s56, 18
    s_mul_i32 s57, s56, 5
    s_sub_u32 s57, s6, s57
    s_cmp_eq_u32 s7, 0
    s_cselect_b32 s40, s16, s24
    s_cselect_b32 s41, s17, s25
    s_mov_b32 s42, {4096*1280}
    s_cselect_b32 s42, s42, {1728*1280}
    s_cselect_b32 s56, s4, s56
    s_cselect_b32 s57, s5, s57
    s_and_b32 s41, s41, 0xffff
    s_mov_b32 s43, 0x20000
    s_lshl_b32 s58, s56, 7
    s_lshl_b32 s59, s3, 5
    s_add_u32 s58, s58, s59
    s_mul_i32 s58, s58, 1280
    s_lshl_b32 s59, s57, 8
    s_add_u32 s58, s58, s59
    s_add_u32 s59, s58, 5120
    v_mul_u32_u24 v6, {8*1280}, v2
    v_lshl_add_u32 v6, v1, 4, v6
    s_cmp_eq_u32 s7, 1
    s_cselect_b32 s60, s56, 0
    s_cmp_eq_u32 s60, 13
    s_cselect_b32 s60, s3, 0
    s_cmp_ge_u32 s60, 2
    s_cbranch_scc0 L_SV_TL2
    v_mov_b32 v6, 0x7ffffff0
    L_SV_TL2:
    v_mov_b32 v62, {L_ISS}
    {"s_mov_b32 s42, 0" if opt.exp in (21, 22) else ""}
    L_SV_ISSW:
    ds_read_b32 v63, v62
    s_waitcnt lgkmcnt(0)
    v_readfirstlane_b32 s60, v63
    s_cmp_ge_u32 s60, 8
    s_cbranch_scc1 L_SV_ISSOK
    s_sleep {opt.sleep}
    s_branch L_SV_ISSW
    L_SV_ISSOK:
    """)
    for t in range(8):
        so = "s58" if t < 4 else "s59"
        a(f"buffer_load_dwordx4 a[{4*t}:{4*t+3}], v6, s[40:43], {so} offen offset:{1280*(t%4)} {opt.wflag}")
    a.label("L_SV_BAR2")
    stamp(8)
    a("""
    s_waitcnt lgkmcnt(0)
    s_barrier
    """)
    stamp(9)
    a(f"""
    s_cmp_eq_u32 s3, 0
    s_cbranch_scc0 L_SV_POSTPUB
    v_mov_b32 v60, {L_ML}
    ds_read_b128 v[20:23], v60
    ds_read_b128 v[24:27], v60 offset:16
    ds_read_b128 v[28:31], v60 offset:32
    ds_read_b128 v[32:35], v60 offset:48
    v_lshlrev_b32 v61, 3, v0
    """)
    for w in range(8):
        a(f"ds_read_b64 v[{40+2*w}:{41+2*w}], v61 offset:{L_OW+512*w}")
    a("s_waitcnt lgkmcnt(8)")
    a("""
    v_max3_f32 v36, v20, v22, v24
    v_max3_f32 v37, v26, v28, v30
    v_max3_f32 v36, v36, v32, v34
    v_max_f32 v36, v36, v37
    """)
    for w in range(8):
        a(f"v_sub_f32 v{20+2*w}, v{20+2*w}, v36")
    for w in range(8):
        a(f"v_exp_f32 v{20+2*w}, v{20+2*w}")
    a("v_mul_f32 v37, v20, v21")
    for w in range(1, 8):
        a(f"v_fmac_f32 v37, v{20+2*w}, v{21+2*w}")
    a("s_waitcnt lgkmcnt(0)")
    a("v_mul_f32 v38, v20, v40")
    a("v_mul_f32 v39, v20, v41")
    for w in range(1, 8):
        a(f"v_fmac_f32 v38, v{20+2*w}, v{40+2*w}")
        a(f"v_fmac_f32 v39, v{20+2*w}, v{41+2*w}")
    a(f"""
    v_min_u32 v36, -2, v36
    v_min_u32 v37, -2, v37
    v_min_u32 v38, -2, v38
    v_min_u32 v39, -2, v39
    s_mul_i32 s48, s2, {OPSTR}
    s_add_u32 s48, s48, {WS_OP}
    buffer_store_dwordx2 v[38:39], v61, s[32:35], s48 offen sc1
    v_mov_b32 v60, 512
    s_mov_b64 exec, 1
    buffer_store_dwordx2 v[36:37], v60, s[32:35], s48 offen sc1
    s_mov_b64 exec, -1
    L_SV_POSTPUB:
    """)
    stamp(10)
    a("""
    s_cmp_eq_u32 s7, 0
    s_cbranch_scc1 L_SV_OGATH
    s_cmp_eq_u32 s7, 1
    s_cbranch_scc1 L_SV_GEMV2
    s_cmp_eq_u32 s7, 2
    s_cbranch_scc0 L_SV_EXIT
    s_cmp_ge_u32 s3, 2
    s_cbranch_scc1 L_FINAL
    s_branch L_SV_EXIT
    """)
    a.label("L_SV_OGATH")
    a(f"""
    v_bfe_u32 v60, v0, 3, 1
    v_mul_u32_u24 v61, {4*OPSTR}, v60
    v_and_b32 v62, 7, v0
    v_lshl_add_u32 v62, v2, 3, v62
    v_lshl_add_u32 v63, v62, 2, v61
    v_and_b32 v64, 3, v0
    v_mul_u32_u24 v64, {OPSTR}, v64
    v_add_u32 v64, v64, v61
    s_mul_i32 s48, s4, {8*OPSTR}
    s_add_u32 s48, s48, {WS_OP}
    s_add_u32 s49, s48, 512
    s_lshl_b32 s50, s3, 7
    s_add_u32 s48, s48, s50
    v_lshlrev_b32 v65, 9, v60
    v_lshl_add_u32 v65, v62, 2, v65
    s_add_u32 s50, s50, {L_AT}
    v_add_u32 v65, s50, v65
    s_mov_b32 s53, 0
    L_SV_OP:
    buffer_load_dwordx2 v[20:21], v64, s[32:35], s49 offen sc1
    buffer_load_dword v22, v63, s[32:35], s48 offen sc1
    buffer_load_dword v23, v63, s[32:35], s48 offen offset:{OPSTR} sc1
    buffer_load_dword v24, v63, s[32:35], s48 offen offset:{2*OPSTR} sc1
    buffer_load_dword v25, v63, s[32:35], s48 offen offset:{3*OPSTR} sc1
    s_add_u32 s53, s53, 1
    s_waitcnt vmcnt(0)
    v_max3_u32 v26, v20, v21, v22
    v_max3_u32 v27, v23, v24, v25
    v_max_u32 v26, v26, v27
    v_cmp_eq_u32 vcc, -1, v26
    s_cmp_gt_u32 s53, 20000
    s_cbranch_scc1 L_SV_OOK
    s_cbranch_vccnz L_SV_OP
    L_SV_OOK:
    """)
    stamp(11)
    a(f"""
    v_max_f32_dpp v26, v20, v20 quad_perm:[1,0,3,2] row_mask:0xf bank_mask:0xf
    v_max_f32_dpp v26, v26, v26 quad_perm:[2,3,0,1] row_mask:0xf bank_mask:0xf
    v_sub_f32 v20, v20, v26
    v_exp_f32 v20, v20
    v_mul_f32 v21, v20, v21
    v_add_f32_dpp v27, v21, v21 quad_perm:[1,0,3,2] row_mask:0xf bank_mask:0xf
    v_add_f32_dpp v27, v27, v27 quad_perm:[2,3,0,1] row_mask:0xf bank_mask:0xf
    v_rcp_f32 v27, v27
    v_mul_f32 v20, v20, v27
    v_mul_f32_dpp v28, v20, v22 quad_perm:[0,0,0,0] row_mask:0xf bank_mask:0xf
    v_fmac_f32_dpp v28, v20, v23 quad_perm:[1,1,1,1] row_mask:0xf bank_mask:0xf
    v_fmac_f32_dpp v28, v20, v24 quad_perm:[2,2,2,2] row_mask:0xf bank_mask:0xf
    v_fmac_f32_dpp v28, v20, v25 quad_perm:[3,3,3,3] row_mask:0xf bank_mask:0xf
    v_cvt_pk_bf16_f32 v28, v28, v28
    ds_write_b32 v65, v28
    """)
    a.label("L_SV_GEMV2")
    a(f"""
    v_bfe_u32 v60, v0, 3, 1
    v_lshlrev_b32 v60, 9, v60
    v_lshl_add_u32 v60, v2, 5, v60
    s_lshl_b32 s50, s3, 7
    s_add_u32 s50, s50, {L_AT}
    v_add_u32 v60, s50, v60
    ds_read_b128 v[40:43], v60
    ds_read_b128 v[44:47], v60 offset:16
    s_waitcnt lgkmcnt(0)
    """)
    for t in range(8):
        ar = 12 + 4*(t % 2)
        for r in range(4):
            a(f"v_and_b32 v{ar+r}, v{40+t}, v{8+r}")
        a(f"s_waitcnt vmcnt({7-t})")
        c = "0" if t == 0 else "v[84:87]"
        a(f"v_mfma_f32_16x16x32_bf16 v[84:87], v[{ar}:{ar+3}], a[{4*t}:{4*t+3}], {c}")
    a(f"""
    v_lshlrev_b32 v60, 4, v0
    s_lshl_b32 s50, s3, 10
    s_add_u32 s50, s50, {L_YR}
    v_add_u32 v61, s50, v60
    ds_write_b128 v61, v[84:87]
    s_waitcnt lgkmcnt(0)
    s_barrier
    s_cmp_eq_u32 s3, 0
    s_cbranch_scc0 L_SV_EXIT
    ds_read_b128 v[20:23], v60 offset:{L_YR}
    ds_read_b128 v[24:27], v60 offset:{L_YR+1024}
    ds_read_b128 v[28:31], v60 offset:{L_YR+2048}
    ds_read_b128 v[32:35], v60 offset:{L_YR+3072}
    ; y slot
    s_mul_i32 s48, s4, 5
    s_add_u32 s48, s48, s5
    s_add_u32 s49, s6, 160
    s_cmp_eq_u32 s7, 0
    s_cselect_b32 s48, s48, s49
    s_lshl_b32 s48, s48, 10
    s_add_u32 s48, s48, {WS_Y}
    v_lshlrev_b32 v6, 4, v0
    s_waitcnt lgkmcnt(0)
    """)
    for r in range(4):
        a(f"v_add_f32 v{20+r}, v{20+r}, v{24+r}")
        a(f"v_add_f32 v{28+r}, v{28+r}, v{32+r}")
    for r in range(4):
        a(f"v_add_f32 v{20+r}, v{20+r}, v{28+r}")
    for r in range(4):
        a(f"v_min_u32 v{20+r}, -2, v{20+r}")
    a("buffer_store_dwordx4 v[20:23], v6, s[32:35], s48 offen sc1")
    stamp(12)
    a("s_branch L_SV_EXIT")
    a.label("L_FINAL")
    a(f"""
    s_sub_u32 s44, s6, 70
    s_lshl_b32 s44, s44, 1
    s_add_u32 s44, s44, s3
    s_sub_u32 s44, s44, 2
    s_lshr_b32 s45, s44, 3
    s_bfe_u32 s46, s44, 0x10002
    s_and_b32 s47, s44, 3
    v_lshrrev_b32 v60, 1, v0
    v_lshlrev_b32 v60, 7, v60
    v_and_b32 v61, 1, v0
    v_lshl_add_u32 v60, v61, 4, v60
    s_mov_b32 s54, {WS_F+32}
    s_mov_b32 s53, 0
    L_FN_FP:
    buffer_load_dwordx4 v[20:23], v60, s[32:35], s54 offen sc1
    s_add_u32 s53, s53, 1
    s_waitcnt vmcnt(0)
    v_and_b32 v20, v20, v21
    v_and_b32 v22, v22, v23
    v_and_b32 v20, v20, v22
    v_cmp_ne_u32 vcc, 1, v20
    s_cmp_gt_u32 s53, 20000
    s_cbranch_scc1 L_FN_FOK
    s_cbranch_vccz L_FN_FOK
    s_sleep 2
    s_branch L_FN_FP
    L_FN_FOK:
    s_mov_b32 s36, s8
    s_and_b32 s37, s9, 0xffff
    s_mov_b32 s38, 2560
    s_mov_b32 s39, 0x20000
    s_mov_b32 s40, s26
    s_and_b32 s41, s27, 0xffff
    s_mov_b32 s42, 2560
    s_mov_b32 s43, 0x20000
    s_mul_i32 s48, s46, 1280
    s_lshl_b32 s49, s45, 8
    s_add_u32 s48, s48, s49
    s_and_b32 s49, s47, 1
    s_lshl_b32 s49, s49, 7
    s_add_u32 s48, s48, s49
    s_lshr_b32 s49, s47, 1
    s_lshl_b32 s49, s49, 3
    s_add_u32 s48, s48, s49
    v_and_b32 v61, 7, v0
    v_lshlrev_b32 v62, 4, v61
    buffer_load_dwordx2 v[50:51], v62, s[36:39], s48 offen
    v_lshrrev_b32 v60, 3, v0
    v_mul_u32_u24 v63, 5120, v60
    v_lshl_add_u32 v63, v61, 4, v63
    v_mov_b32 v64, 0x7ffffff0
    v_cmp_gt_u32 vcc, 6, v60
    v_cndmask_b32 v64, v64, v63, vcc
    s_lshl_b32 s49, s45, 10
    s_lshl_b32 s50, s46, 9
    s_add_u32 s49, s49, s50
    s_lshl_b32 s50, s47, 7
    s_add_u32 s49, s49, s50
    s_add_u32 s49, s49, {WS_Y}
    s_add_u32 s50, s49, {160*1024}
    s_add_u32 s51, s50, 40960
    s_add_u32 s55, s49, 40960
    s_add_u32 s56, s49, {2*40960}
    s_add_u32 s57, s49, {3*40960}
    s_mov_b32 s53, 0
    L_FN_P1:
    buffer_load_dwordx4 v[20:23], v63, s[32:35], s50 offen sc1
    buffer_load_dwordx4 v[24:27], v64, s[32:35], s51 offen sc1
    s_add_u32 s53, s53, 1
    s_waitcnt vmcnt(0)
    v_max3_u32 v28, v20, v21, v22
    v_max3_u32 v29, v23, v24, v25
    v_max3_u32 v28, v28, v26, v27
    v_max_u32 v28, v28, v29
    v_cmp_eq_u32 vcc, -1, v28
    s_cmp_gt_u32 s53, 20000
    s_cbranch_scc1 L_FN_OK1
    s_cbranch_vccnz L_FN_P1
    L_FN_OK1:
    """)
    def xlane_reduce(base, tmp):
        for r in range(4):
            a(f"v_add_f32_dpp v{base+r}, v{base+r}, v{base+r} row_ror:8 row_mask:0xf bank_mask:0xf")
        for r in range(4):
            a(f"v_mov_b32 v{tmp+r}, v{base+r}")
        for r in range(4):
            a(f"v_permlane16_swap_b32 v{tmp+r}, v{base+r}")
        for r in range(4):
            a(f"v_add_f32 v{base+r}, v{base+r}, v{tmp+r}")
        for r in range(4):
            a(f"v_mov_b32 v{tmp+r}, v{base+r}")
        for r in range(4):
            a(f"v_permlane32_swap_b32 v{tmp+r}, v{base+r}")
        for r in range(4):
            a(f"v_add_f32 v{base+r}, v{base+r}, v{tmp+r}")
    for r in range(4):
        a(f"v_add_f32 v{20+r}, v{20+r}, v{24+r}")
    xlane_reduce(20, 24)
    a(f"""
    v_cvt_pk_bf16_f32 v24, v20, v21
    v_cvt_pk_bf16_f32 v25, v22, v23
    v_lshlrev_b32 v20, 16, v24
    v_and_b32 v21, 0xffff0000, v24
    v_lshlrev_b32 v22, 16, v25
    v_and_b32 v23, 0xffff0000, v25
    s_mov_b32 s58, 0x{f2u(-1.4426950408889634):08x}
    """)
    for r in range(4):
        a(f"v_mul_f32 v{24+r}, s58, v{20+r}")
    for r in range(4):
        a(f"v_exp_f32 v{24+r}, v{24+r}")
    for r in range(4):
        a(f"v_add_f32 v{24+r}, 1.0, v{24+r}")
    for r in range(4):
        a(f"v_rcp_f32 v{24+r}, v{24+r}")
    for r in range(4):
        a(f"v_mul_f32 v{24+r}, v{24+r}, v{20+r}")
    a(f"""
    v_cvt_pk_bf16_f32 v52, v24, v25
    v_cvt_pk_bf16_f32 v53, v26, v27
    v_lshlrev_b32 v54, 16, v52
    v_and_b32 v55, 0xffff0000, v52
    v_lshlrev_b32 v56, 16, v53
    v_and_b32 v57, 0xffff0000, v53
    v_lshlrev_b32 v40, 16, v50
    v_and_b32 v41, 0xffff0000, v50
    v_lshlrev_b32 v42, 16, v51
    v_and_b32 v43, 0xffff0000, v51
    s_mov_b32 s53, 0
    L_FN_P2:
    buffer_load_dwordx4 v[20:23], v63, s[32:35], s49 offen sc1
    buffer_load_dwordx4 v[24:27], v63, s[32:35], s55 offen sc1
    buffer_load_dwordx4 v[28:31], v63, s[32:35], s56 offen sc1
    buffer_load_dwordx4 v[32:35], v63, s[32:35], s57 offen sc1
    s_add_u32 s53, s53, 1
    s_waitcnt vmcnt(0)
    v_max3_u32 v36, v20, v21, v22
    v_max3_u32 v37, v23, v24, v25
    v_max3_u32 v38, v26, v27, v28
    v_max3_u32 v39, v29, v30, v31
    v_max3_u32 v36, v36, v32, v33
    v_max3_u32 v37, v37, v34, v35
    v_max3_u32 v36, v36, v38, v39
    v_max_u32 v36, v36, v37
    v_cmp_eq_u32 vcc, -1, v36
    s_cmp_gt_u32 s53, 20000
    s_cbranch_scc1 L_FN_OK2
    s_cbranch_vccnz L_FN_P2
    L_FN_OK2:
    """)
    stamp(11)
    for r in range(4):
        a(f"v_add_f32 v{20+r}, v{20+r}, v{24+r}")
        a(f"v_add_f32 v{28+r}, v{28+r}, v{32+r}")
    for r in range(4):
        a(f"v_add_f32 v{20+r}, v{20+r}, v{28+r}")
    xlane_reduce(20, 24)
    a(f"""
    v_cvt_pk_bf16_f32 v24, v20, v21
    v_cvt_pk_bf16_f32 v25, v22, v23
    v_lshlrev_b32 v20, 16, v24
    v_and_b32 v21, 0xffff0000, v24
    v_lshlrev_b32 v22, 16, v25
    v_and_b32 v23, 0xffff0000, v25
    """)
    for r in range(4):
        a(f"v_mul_f32 v{20+r}, v{20+r}, v{54+r}")
    a(f"""
    v_cvt_pk_bf16_f32 v24, v20, v21
    v_cvt_pk_bf16_f32 v25, v22, v23
    v_lshlrev_b32 v20, 16, v24
    v_and_b32 v21, 0xffff0000, v24
    v_lshlrev_b32 v22, 16, v25
    v_and_b32 v23, 0xffff0000, v25
    """)
    for r in range(4):
        a(f"v_add_f32 v{20+r}, v{20+r}, v{40+r}")
    a(f"""
    v_cvt_pk_bf16_f32 v24, v20, v21
    v_cvt_pk_bf16_f32 v25, v22, v23
    s_mov_b64 exec, 0xff
    buffer_store_dwordx2 v[24:25], v62, s[40:43], s48 offen
    s_mov_b64 exec, -1
    """)
    stamp(12)
    a.label("L_SV_EXIT")
    if TS:
        emit_ts_store(a, 13)
    a.label("L_END")
    a("s_endpgm")
    a.raw(".p2align 6")
    a.label("L_CODE_END")
    a.raw("    s_endpgm")
    a.raw(".fill 256, 4, 0xBF810000")
    return a

DBGTS = False
def emit_ts_store(a, idx):
    if DBGTS:
        import itertools
        a(f"s_memrealtime s[{64+2*idx}:{65+2*idx}]")
        lab = f"L_DBG_SKIP_{next(_cnt)}"
        a(f"""
        s_waitcnt lgkmcnt(0) vmcnt(0)
        s_cmp_eq_u32 s2, 190
        s_cbranch_scc0 {lab}
        s_mov_b64 exec, 1
        v_mov_b32 v99, 0
        """)
        for w, base, ids in ((2, 1, (9, 10, 11, 12, 13)), (0, 6, (14, 3, 5, 6, 9)), (4, 11, (1, 2, 3, 4, 5))):
            l2 = f"L_DBG_W_{next(_cnt)}"
            a(f"s_cmp_eq_u32 s3, {w}")
            a(f"s_cbranch_scc0 {l2}")
            for k, i in enumerate(ids):
                a(f"s_sub_u32 s52, s{64+2*i}, s64")
                a("v_mov_b32 v98, s52")
                a(f"global_store_dword v99, v98, s[28:29] offset:{4*(base+k)}")
            a.label(l2)
        a("s_mov_b64 exec, -1")
        a.label(lab)
        return
    a(f"s_memrealtime s[{64+2*idx}:{65+2*idx}]")
    a(f"""
    s_waitcnt lgkmcnt(0) vmcnt(0)
    s_mov_b32 s52, s30
    s_and_b32 s53, s31, 0xffff
    s_mov_b32 s54, 0x1000000
    s_mov_b32 s55, 0x20000
    s_mul_i32 s56, s2, 12
    s_add_u32 s56, s56, s3
    s_lshl_b32 s56, s56, 6
    s_add_u32 s56, s56, {WS_TS}
    s_mov_b64 exec, 1
    v_mov_b32 v99, 0
    """)
    if HWID: a("s_getreg_b32 s80, hwreg(HW_REG_HW_ID)")
    for i in range(16):
        a(f"v_mov_b32 v98, s{64+2*i}")
        a(f"buffer_store_dword v98, v99, s[52:55], s56 offen offset:{4*i}")
    a("s_mov_b64 exec, -1")

HEADER = open('cdna_kernels/%s.s.ref' % NAME).read().split('; Override launch geometry')[0]

def build(opt):
    a = gen(opt)
    body = a.text()
    src = HEADER + f"""; Override launch geometry by editing the next line (default: block=256,
; grid=ceil(out_elems/256), lds=0). Harness parses it; keep it on one line.
; @launch grid=(256,1,1) block=(768,1,1) lds={LDS_SIZE}
.amdgcn_target "amdgcn-amd-amdhsa--gfx950"
.text
.globl {NAME}_kernel
.p2align 8
.type {NAME}_kernel,@function
{NAME}_kernel:
{body}
.section .rodata,"a"
.p2align 6
.amdhsa_kernel {NAME}_kernel
  .amdhsa_next_free_vgpr 168
  .amdhsa_next_free_sgpr 102
  .amdhsa_accum_offset 100
  .amdhsa_group_segment_fixed_size 0
  .amdhsa_kernarg_size 96
  .amdhsa_user_sgpr_count 2
  .amdhsa_user_sgpr_kernarg_segment_ptr 1
  .amdhsa_system_sgpr_workgroup_id_x 1
.end_amdhsa_kernel
"""
    return src, a

if __name__ == "__main__":
    ap = argparse.ArgumentParser()
    ap.add_argument("-o", default=f"cdna_kernels/{NAME}.s")
    ap.add_argument("--ts", action="store_true")
    ap.add_argument("--dump_scores", action="store_true")
    ap.add_argument("--exp", type=int, default=0)
    ap.add_argument("--sleep", type=int, default=4)
    ap.add_argument("--nopf", action="store_true")
    ap.add_argument("--p23", type=int, default=-1)
    ap.add_argument("--touch", type=int, default=0)
    ap.add_argument("--fine", action="store_true")
    ap.add_argument("--dbgts", action="store_true")
    ap.add_argument("--depth", type=int, default=4)
    ap.add_argument("--kvflag", default="nt")
    ap.add_argument("--wflag", default="nt")
    ap.add_argument("--xv", type=int, default=8)
    opt = ap.parse_args()
    HWID = opt.fine
    DBGTS = opt.dbgts
    if opt.dbgts: opt.ts = True
    import subprocess, re, os, tempfile
    def code_size(src):
        with tempfile.TemporaryDirectory() as d:
            p = os.path.join(d, "t.s"); o = os.path.join(d, "t.o")
            open(p, "w").write(src)
            r = subprocess.run(["clang", "-x", "assembler", "-target", "amdgcn-amd-amdhsa", "-mcpu=gfx950", "-c", p, "-o", o], capture_output=True, text=True)
            assert r.returncode == 0, r.stderr[:3000]
            out = subprocess.run(["llvm-readelf", "-s", o], capture_output=True, text=True).stdout
            for line in out.splitlines():
                if line.strip().endswith("L_CODE_END"):
                    return int(line.split()[1], 16)
        raise RuntimeError("no L_CODE_END")
    opt.pfn = 16
    src, a = build(opt)
    sz = code_size(src)
    opt.pfn = (sz + 1023) // 1024
    src, a = build(opt)
    sz = code_size(src)
    assert opt.pfn * 1024 <= sz + 1024 + 64
    open(opt.o, "w").write(src)
    print("written", opt.o, "lines", len(a.lines), "nops", a.nops, "code bytes", sz, "pfn", opt.pfn)
```
